```python
import torch

def _softmax(x, axis=-1):
    return torch.softmax(x, dim=axis)
def _gelu(x):
    return torch.nn.functional.gelu(x, approximate="tanh")
def _silu(x):
    return torch.nn.functional.silu(x)
def _sigmoid(x):
    return torch.sigmoid(x)
def _layernorm(x, axis=-1, eps=1e-5):
    m = x.mean(dim=axis, keepdim=True)
    v = x.var(dim=axis, keepdim=True, unbiased=False)
    return (x - m) / torch.sqrt(v + eps)
def _scatter_add(tgt, idx, src, axis=0):
    return tgt.clone().index_add_(axis, idx, src)
def _segment_sum(src, seg, n):
    out = torch.zeros((n,) + src.shape[1:], dtype=src.dtype)
    return out.index_add_(0, seg, src)
def _pad(x, pw):
    flat = tuple(v for pair in reversed(pw) for v in pair)
    return torch.nn.functional.pad(x, flat)

kernel_name = 'parallel_sum__softmax_full_mha__moe_arch_mod__prompt'

def setup_inputs():

    _w = (lambda a: (lambda t: t.to(torch.bfloat16) if t.is_floating_point() else t)(torch.as_tensor(a)))
    def _A_setup():
        B, S, D = 1, 2048, 512
        return {
            "x": _w((lambda *s: torch.randn(*s, dtype=torch.bfloat16) * 0.05)(B, S, D)),
            "wqkv": _w((lambda *s: torch.randn(*s, dtype=torch.bfloat16) * 0.2)(D, 3 * D)),
            "wo": _w((lambda *s: torch.randn(*s, dtype=torch.bfloat16) * 0.2)(D, D)),
        }
    _A_in = _A_setup()

    def _B_setup():
        B, S, D, F, C = 1, 2048, 512, 1376, 8
        return {
            "x": _w((lambda *s: torch.randn(*s, dtype=torch.bfloat16) * 0.05)(B, S, D)),
            "w_r": _w((lambda *s: torch.randn(*s, dtype=torch.bfloat16) * 1.6)(D)),
            "w_gate": _w((lambda *s: torch.randn(*s, dtype=torch.bfloat16) * 0.2)(D, F)),
            "w_up": _w((lambda *s: torch.randn(*s, dtype=torch.bfloat16) * 0.2)(D, F)),
            "w_down": _w((lambda *s: torch.randn(*s, dtype=torch.bfloat16) * 0.2)(F, D)),
        }
    _B_in = _B_setup()

    return {
        "A_x": _A_in["x"],
        "A_wqkv": _A_in["wqkv"],
        "A_wo": _A_in["wo"],
        "B_x": _B_in["x"],
        "B_w_r": _B_in["w_r"],
        "B_w_gate": _B_in["w_gate"],
        "B_w_up": _B_in["w_up"],
        "B_w_down": _B_in["w_down"],
    }

def reference(A_x, A_wqkv, A_wo, B_x, B_w_r, B_w_gate, B_w_up, B_w_down):
    def _A_ref(x, wqkv, wo):
        B, S, D = x.shape
        H = 32; Dh = D // H
        qkv = (lambda x, *d: x.permute(*d))((x @ wqkv).reshape(B, S, 3, H, Dh), 2, 0, 3, 1, 4)
        q, k, v = qkv[0], qkv[1], qkv[2]
        scale = Dh ** -0.5
        scores = torch.einsum("bhqd,bhkd->bhqk", q, k) * scale
        p = _softmax(scores, axis=-1)
        o = torch.einsum("bhqk,bhkd->bhqd", p, v)
        return (lambda x, *d: x.permute(*d))(o, 0, 2, 1, 3).reshape(B, S, D) @ wo

    def _B_ref(x, w_r, w_gate, w_up, w_down):
        B, S, D = x.shape
        C = 8
        r = x @ w_r
        idx = torch.argsort(-r, axis=-1)[:, :C]
        idx_e = (lambda x, n, axis: torch.repeat_interleave(x, n, dim=axis))(idx.reshape(B, C, 1), D, axis=2)
        x_sel = (lambda x, i, axis: torch.take_along_dim(x, i, dim=axis))(x, idx_e, axis=1)
        g = _silu(x_sel @ w_gate)
        u = x_sel @ w_up
        y = (g * u) @ w_down
        r_sel = _sigmoid((lambda x, i, axis: torch.take_along_dim(x, i, dim=axis))(r, idx, axis=1))
        y = y * r_sel.reshape(B, C, 1)
        b_off = (torch.arange(B) * S).reshape(B, 1)
        flat_idx = (idx + b_off).reshape(B * C)
        zero = (x * 0.0).reshape(B * S, D)
        upd = _scatter_add(zero, flat_idx, y.reshape(B * C, D), axis=0)
        return x + upd.reshape(B, S, D)

    x = A_x
    xn = _layernorm(x, axis=-1)
    return x + _A_ref(xn, A_wqkv, A_wo) + _B_ref(xn, B_w_r, B_w_gate, B_w_up, B_w_down)
```

```python
class Asm:
    def __init__(self):
        self.lines = []
        self.uid = 0
    def __call__(self, s):
        for ln in s.strip('\n').split('\n'):
            self.lines.append('    ' + ln.strip())
    def label(self, l):
        self.lines.append(l + ':')
    def comment(self, s):
        self.lines.append('    ; ' + s)
    def raw(self, s):
        self.lines.append(s)
    def newlabel(self, base):
        self.uid += 1
        return f'{base}_{self.uid}'
    def text(self):
        return '\n'.join(self.lines) + '\n'

def vr(base, n):
    return f'v[{base}:{base+n-1}]' if n > 1 else f'v{base}'
def sr(base, n):
    return f's[{base}:{base+n-1}]' if n > 1 else f's{base}'

MB = 1 << 20
WS_XN  = 0
WS_QP  = 2 * MB
WS_KP  = 4 * MB
WS_VP  = 6 * MB
WS_OP  = 8 * MB
WS_KEY = 10 * MB
WS_Y   = 10 * MB + 65536
WS_SEL = 10 * MB + 131072
WS_SIZE_SRD = 16 * MB

def build_srd(a, dst, lo, hi, nbytes):
    a(f's_mov_b32 s{dst}, s{lo}')
    a(f's_and_b32 s{dst+1}, s{hi}, 0xffff')
    a(f's_mov_b32 s{dst+2}, {nbytes}')
    a(f's_mov_b32 s{dst+3}, 0x00020000')

def kernel_desc(name, vgpr, sgpr=102):
    acc = (vgpr + 3) // 4 * 4
    return f'''.amdhsa_kernel {name}
  .amdhsa_next_free_vgpr {vgpr}
  .amdhsa_next_free_sgpr {sgpr}
  .amdhsa_accum_offset {acc}
  .amdhsa_group_segment_fixed_size 0
  .amdhsa_kernarg_size 88
  .amdhsa_user_sgpr_count 2
  .amdhsa_user_sgpr_kernarg_segment_ptr 1
  .amdhsa_system_sgpr_workgroup_id_x 1
.end_amdhsa_kernel
'''

def kernel_head(a, name):
    a.raw(f'.globl {name}')
    a.raw('.p2align 8')
    a.raw(f'.type {name},@function')
    a.label(name)
```

```python
from common import *

K1_XN_RS = 1040
K1_W_RS = 448
K1_WBUF0 = 64 * K1_XN_RS
K1_WBUF_SZ = 64 * K1_W_RS
K1_LDS = K1_WBUF0 + 2 * K1_WBUF_SZ
K1_VGPR = 240

def emit_k1(a, name):
    kernel_head(a, name)
    END = 'k1_end'
    a(f'''
    s_cmp_ge_u32 s2, 256
    s_cbranch_scc1 {END}
    s_load_dwordx4 s[4:7], s[0:1], 0
    s_load_dwordx2 s[8:9], s[0:1], 32
    s_load_dwordx2 s[10:11], s[0:1], 80
    s_lshr_b32 s28, s2, 3
    s_and_b32 s29, s2, 7
    v_lshrrev_b32 v1, 6, v0
    v_and_b32 v2, 63, v0
    v_lshrrev_b32 v3, 4, v2
    v_and_b32 v4, 15, v2
    v_readfirstlane_b32 s30, v1
    s_mov_b32 s40, 0x3f803f80
    s_mov_b32 s41, 0x00003f80
    s_mov_b32 s42, 0x3f800000
    s_mov_b32 s32, 0
    s_mov_b32 s33, 4096
    s_mov_b32 s34, 8192
    s_mov_b32 s35, 12288
    s_waitcnt lgkmcnt(0)
    ''')
    build_srd(a, 12, 4, 5, 2097152)
    build_srd(a, 16, 6, 7, 1572864)
    build_srd(a, 20, 8, 9, 1024)
    build_srd(a, 24, 10, 11, WS_SIZE_SRD)
    a(f'''
    s_lshl_b32 s31, s28, 6
    s_lshl_b32 s36, s30, 4
    s_add_u32 s31, s31, s36
    v_add_u32 v5, s31, v3
    v_lshlrev_b32 v8, 2, v5
    v_lshlrev_b32 v5, 10, v5
    v_lshl_add_u32 v5, v4, 4, v5
    ''')
    a(f'''
    v_add_u32 v6, s36, v3
    v_mul_u32_u24 v6, {K1_XN_RS}, v6
    v_lshl_add_u32 v6, v4, 4, v6
    ''')
    def ldx(p):
        for c in range(4):
            a(f'buffer_load_dwordx4 {vr(64+16*p+4*c,4)}, v5, s[12:15], s{32+p} offen offset:{c*256}')
    ldx(0)
    a('v_lshlrev_b32 v9, 4, v4')
    for c in range(4):
        a(f'buffer_load_dwordx4 {vr(48+4*c,4)}, v9, s[20:23], 0 offen offset:{c*256}')
    ldx(1); ldx(2); ldx(3)
    a(f'''
    v_lshrrev_b32 v9, 3, v2
    v_add_u32 v9, s36, v9
    v_mov_b32 v11, v9
    s_movk_i32 s37, 3072
    v_mul_lo_u32 v9, v9, s37
    v_and_b32 v10, 7, v2
    v_lshl_add_u32 v9, v10, 4, v9
    s_lshl_b32 s38, s29, 7
    v_add_u32 v9, s38, v9
    v_add_u32 v10, {8*3072}, v9
    v_mul_u32_u24 v11, {K1_W_RS}, v11
    v_and_b32 v12, 7, v2
    v_lshl_add_u32 v11, v12, 4, v11
    v_add_u32 v11, {K1_WBUF0}, v11
    v_add_u32 v12, {8*K1_W_RS}, v11
    s_mov_b32 s39, 0
    ''')
    def ldw():
        for j in range(6):
            a(f'buffer_load_dwordx4 {vr(128+4*j,4)}, v{9+j//3}, s[16:19], s39 offen offset:{(j%3)*1024}')
    def stw(buf):
        for j in range(6):
            a(f'ds_write_b128 v{11+j//3}, {vr(128+4*j,4)} offset:{(j%3)*128 + buf*K1_WBUF_SZ}')
    ldw()
    a(f'''
    v_and_b32 v13, 31, v2
    s_and_b32 s36, s30, 1
    s_lshl_b32 s36, s36, 5
    v_add_u32 v13, s36, v13
    v_mul_u32_u24 v13, {K1_XN_RS}, v13
    v_lshrrev_b32 v14, 5, v2
    v_lshl_add_u32 v13, v14, 4, v13
    ''')
    a(f'''
    v_lshrrev_b32 v14, 5, v2
    v_lshlrev_b32 v14, 3, v14
    v_bfe_u32 v15, v2, 2, 2
    v_add_u32 v14, v14, v15
    v_mul_u32_u24 v14, {K1_W_RS}, v14
    v_bfe_u32 v15, v2, 4, 1
    v_lshlrev_b32 v15, 5, v15
    v_add_u32 v14, v14, v15
    v_and_b32 v15, 3, v2
    v_lshl_add_u32 v14, v15, 3, v14
    s_lshr_b32 s36, s30, 1
    s_lshl_b32 s36, s36, 6
    v_add_u32 v14, s36, v14
    v_add_u32 v15, {K1_WBUF0 + K1_WBUF_SZ}, v14
    v_add_u32 v14, {K1_WBUF0}, v14
    ''')
    A1a, A1b, A2a, A2b, MEAN, VAR, RINV, NEGM = 152, 153, 154, 155, 156, 157, 158, 159
    def ln_pass(p):
        X = 64 + 16 * p
        a(f's_waitcnt vmcnt({(3-p)*4 + 6})')
        for j in range(16):
            acc1 = A1a if j % 2 == 0 else A1b
            acc2 = A2a if j % 2 == 0 else A2b
            c1 = '0' if j < 2 else f'v{acc1}'
            c2 = '0' if j < 2 else f'v{acc2}'
            a(f'v_dot2_f32_bf16 v{acc1}, v{X+j}, s40, {c1}')
            a(f'v_dot2_f32_bf16 v{acc2}, v{X+j}, v{X+j}, {c2}')
        a('s_nop 2')
        a(f'v_add_f32 v{A1a}, v{A1a}, v{A1b}')
        a(f'v_add_f32 v{A2a}, v{A2a}, v{A2b}')
        for ror in (8, 4, 2, 1):
            a('s_nop 0')
            a(f'v_add_f32_dpp v{A1a}, v{A1a}, v{A1a} row_ror:{ror} row_mask:0xf bank_mask:0xf')
            a(f'v_add_f32_dpp v{A2a}, v{A2a}, v{A2a} row_ror:{ror} row_mask:0xf bank_mask:0xf')
        a(f'''
        v_mul_f32 v{MEAN}, 0x3b000000, v{A1a}
        v_mul_f32 v{VAR}, 0x3b000000, v{A2a}
        v_fma_f32 v{VAR}, -v{MEAN}, v{MEAN}, v{VAR}
        v_max_f32 v{VAR}, 0, v{VAR}
        v_cvt_pk_bf16_f32 v{MEAN}, 0, v{MEAN}
        v_cvt_pk_bf16_f32 v{VAR}, 0, v{VAR}
        v_add_f32 v{VAR}, 0x3727c5ac, v{VAR}
        v_cvt_pk_bf16_f32 v{VAR}, 0, v{VAR}
        v_sqrt_f32 v{VAR}, v{VAR}
        v_sub_f32 v{NEGM}, 0, v{MEAN}
        v_cvt_pk_bf16_f32 v{VAR}, 0, v{VAR}
        v_rcp_f32 v{RINV}, v{VAR}
        ''')
        D = 16
        for j in range(16):
            a(f'v_dot2_f32_bf16 v{D+2*j}, v{X+j}, s41, v{NEGM}')
            a(f'v_dot2_f32_bf16 v{D+2*j+1}, v{X+j}, s42, v{NEGM}')
        for k in range(32):
            a(f'v_cvt_pk_bf16_f32 v{D+k}, 0, v{D+k}')
        for k in range(32):
            a(f'v_mul_f32 v{D+k}, v{D+k}, v{RINV}')
        for j in range(16):
            a(f'v_cvt_pk_bf16_f32 v{X+j}, v{D+2*j}, v{D+2*j+1}')
        for c in range(4):
            a(f'ds_write_b128 v6, {vr(X+4*c,4)} offset:{p*4*K1_XN_RS + c*256}')
        for j in range(16):
            acc = A1a if j % 2 == 0 else A1b
            c1 = '0' if j < 2 else f'v{acc}'
            a(f'v_dot2_f32_bf16 v{acc}, v{X+j}, v{48+j}, {c1}')
        a('s_nop 2')
        a(f'v_add_f32 v{A1a}, v{A1a}, v{A1b}')
        for ror in (8, 4, 2, 1):
            a('s_nop 1')
            a(f'v_add_f32_dpp v{A1a}, v{A1a}, v{A1a} row_ror:{ror} row_mask:0xf bank_mask:0xf')
        a(f'''
        v_cvt_pk_bf16_f32 v{A1a}, 0, v{A1a}
        v_ashrrev_i32 v{A1b}, 31, v{A1a}
        v_or_b32 v{A1b}, 0x80000000, v{A1b}
        v_xor_b32 v{A1a}, v{A1a}, v{A1b}
        v_and_b32 v{A1a}, 0xffff0000, v{A1a}
        v_lshrrev_b32 v{A1b}, 2, v8
        v_sub_u32 v{A1b}, {2047 - 4*p}, v{A1b}
        v_or_b32 v{A1a}, v{A1a}, v{A1b}
        ''')
        SKK = a.newlabel('k1_skipkey')
        a(f'''
        s_cmp_lg_u32 s29, 0
        s_cbranch_scc1 {SKK}
        v_cmp_eq_u32 vcc, 0, v4
        s_and_saveexec_b64 s[44:45], vcc
        s_mov_b32 s36, {WS_KEY + p*16}
        buffer_store_dword v{A1a}, v8, s[24:27], s36 offen
        s_mov_b64 exec, s[44:45]
        ''')
        a.label(SKK)
        SKX = a.newlabel('k1_skipxn')
        a(f'''
        s_lshl_b32 s36, s30, 1
        s_add_u32 s36, s36, {p//2}
        s_cmp_lg_u32 s29, s36
        s_cbranch_scc1 {SKX}
        ''')
        for c in range(4):
            a(f'buffer_store_dwordx4 {vr(X+4*c,4)}, v5, s[24:27], s{32+p} offen offset:{c*256}')
        a.label(SKX)
    for p in range(4):
        ln_pass(p)
    SKY = 'k1_skipy'
    a(f'''
    s_cmp_lg_u32 s2, 0
    s_cbranch_scc1 {SKY}
    v_mov_b32 v16, 0
    v_mov_b32 v17, 0
    v_mov_b32 v18, 0
    v_mov_b32 v19, 0
    v_lshlrev_b32 v20, 6, v0
    s_mov_b32 s36, {WS_Y}
    buffer_store_dwordx4 v[16:19], v20, s[24:27], s36 offen
    buffer_store_dwordx4 v[16:19], v20, s[24:27], s36 offen offset:16
    buffer_store_dwordx4 v[16:19], v20, s[24:27], s36 offen offset:32
    buffer_store_dwordx4 v[16:19], v20, s[24:27], s36 offen offset:48
    ''')
    a.label(SKY)
    AQ, AK, AV = 160, 176, 192
    for r in range(48):
        a(f'v_mov_b32 v{160+r}, 0')
    a('s_waitcnt vmcnt(0)')
    stw(0)
    a('s_add_u32 s39, s39, %d' % (64*3072))
    ldw()
    a('s_waitcnt lgkmcnt(0)')
    a('s_barrier')
    XF = [208, 212]; WF = [[216, 220, 224], [228, 232, 236]]
    def rd(c, s, buf):
        st = s & 1
        a(f'ds_read_b128 {vr(XF[st],4)}, v13 offset:{128*c + 32*s}')
        for P in range(3):
            for u in range(2):
                a(f'ds_read_b64_tr_b16 {vr(WF[st][P]+2*u,2)}, v{14+buf} offset:{(16*s+4*u)*K1_W_RS + P*128}')
    for c in range(8):
        buf = c & 1
        rd(c, 0, buf)
        for s in range(4):
            if s < 3:
                rd(c, s+1, buf)
                a('s_waitcnt lgkmcnt(7)')
            else:
                a('s_waitcnt lgkmcnt(0)')
            st = s & 1
            a(f'v_mfma_f32_32x32x16_bf16 {vr(AQ,16)}, {vr(WF[st][0],4)}, {vr(XF[st],4)}, {vr(AQ,16)}')
            a(f'v_mfma_f32_32x32x16_bf16 {vr(AK,16)}, {vr(WF[st][1],4)}, {vr(XF[st],4)}, {vr(AK,16)}')
            a(f'v_mfma_f32_32x32x16_bf16 {vr(AV,16)}, {vr(XF[st],4)}, {vr(WF[st][2],4)}, {vr(AV,16)}')
            if s == 1 and c < 7:
                a('s_waitcnt vmcnt(0)')
                stw(buf ^ 1)
                if c < 6:
                    a('s_add_u32 s39, s39, %d' % (64*3072))
                    ldw()
        if c < 7:
            a('s_waitcnt lgkmcnt(0)')
            a('s_barrier')
    a('s_nop 15')
    a('s_nop 3')
    a(f'''
    v_and_b32 v16, 31, v2
    s_lshl_b32 s36, s28, 6
    s_and_b32 s37, s30, 1
    s_lshl_b32 s37, s37, 5
    s_add_u32 s36, s36, s37
    v_add_u32 v16, s36, v16
    v_lshlrev_b32 v16, 5, v16
    v_lshrrev_b32 v17, 5, v2
    v_lshl_add_u32 v16, v17, 4, v16
    s_lshl_b32 s36, s29, 2
    s_lshr_b32 s37, s30, 1
    s_lshl_b32 s37, s37, 1
    s_add_u32 s36, s36, s37
    s_lshl_b32 s36, s36, 16
    s_mov_b32 s38, 0x3eb8aa3b
    ''')
    for r in range(16):
        a(f'v_mul_f32 v{AQ+r}, s38, v{AQ+r}')
    for e in range(2):
        for u in range(4):
            a(f'v_cvt_pk_bf16_f32 v{20+4*e+u}, v{AQ+8*e+2*u}, v{AQ+8*e+2*u+1}')
            a(f'v_cvt_pk_bf16_f32 v{28+4*e+u}, v{AK+8*e+2*u}, v{AK+8*e+2*u+1}')
    a(f's_add_u32 s37, s36, {WS_QP}')
    a('buffer_store_dwordx4 v[20:23], v16, s[24:27], s37 offen')
    a(f's_add_u32 s37, s36, {WS_QP + 65536}')
    a('buffer_store_dwordx4 v[24:27], v16, s[24:27], s37 offen')
    a(f's_add_u32 s37, s36, {WS_KP}')
    a('buffer_store_dwordx4 v[28:31], v16, s[24:27], s37 offen')
    a(f's_add_u32 s37, s36, {WS_KP + 65536}')
    a('buffer_store_dwordx4 v[32:35], v16, s[24:27], s37 offen')
    a(f'''
    v_bfe_u32 v16, v2, 4, 1
    v_lshlrev_b32 v16, 16, v16
    v_lshrrev_b32 v17, 5, v2
    v_lshl_add_u32 v16, v17, 8, v16
    v_and_b32 v17, 15, v2
    v_lshl_add_u32 v16, v17, 4, v16
    s_lshl_b32 s37, s28, 1
    s_and_b32 s38, s30, 1
    s_add_u32 s37, s37, s38
    s_lshl_b32 s37, s37, 10
    s_add_u32 s37, s37, s36
    s_add_u32 s37, s37, {WS_VP}
    ''')
    for t in range(2):
        for u in range(4):
            a(f'v_cvt_pk_bf16_f32 v{36+4*t+u}, v{AV+8*t+2*u}, v{AV+8*t+2*u+1}')
    a('buffer_store_dwordx4 v[36:39], v16, s[24:27], s37 offen')
    a('buffer_store_dwordx4 v[40:43], v16, s[24:27], s37 offen offset:512')
    a('s_waitcnt vmcnt(0)')
    a.label(END)
    a('s_endpgm')
```

```python
from common import *
try:
    import k2moe
except ImportError:
    k2moe = None

K2_LDS = 163840
K2_VGPR = 128
CNT_OFF = 131072
BIAS = 40.0
BIAS_HEX = '0x42200000'

QF = 4; KF = [8, 12]; VF0 = 16; VF1 = 20; P = 24; T = 32
VK = 40; VV = 41; VCNT = 42; VONE = 43; TMP = 44
S = [48, 64]; CM = 80; O = 96

def emit_attn(a):
    a(f'''
    v_and_b32 v{TMP}, 31, v0
    s_lshl_b32 s15, s14, 8
    s_lshl_b32 s18, s12, 5
    s_add_u32 s15, s15, s18
    v_add_u32 v{TMP}, s15, v{TMP}
    v_lshlrev_b32 v{TMP+3}, 10, v{TMP}
    v_lshlrev_b32 v{TMP}, 5, v{TMP}
    v_lshrrev_b32 v{TMP+1}, 5, v0
    v_lshl_add_u32 v{TMP}, v{TMP+1}, 4, v{TMP}
    v_lshl_add_u32 v{TMP+3}, v{TMP+1}, 4, v{TMP+3}
    s_lshl_b32 s15, s13, 16
    s_add_u32 s18, s15, {WS_QP}
    buffer_load_dwordx4 {vr(QF,4)}, v{TMP}, s[8:11], s18 offen
    s_add_u32 s16, s15, {WS_KP}
    s_add_u32 s17, s15, {WS_VP}
    s_lshl_b32 s18, s12, 10
    s_add_u32 s16, s16, s18
    s_add_u32 s17, s17, s18
    v_lshlrev_b32 v{TMP+2}, 4, v0
    ''')
    for c in range(8):
        a(f's_add_u32 s19, s18, {c*8192}')
        a(f's_mov_b32 m0, s19')
        a(f's_add_u32 s19, s16, {c*8192}')
        a(f'buffer_load_dwordx4 v{TMP+2}, s[8:11], s19 offen lds')
        a(f's_add_u32 s19, s18, {65536 + c*8192}')
        a(f's_mov_b32 m0, s19')
        a(f's_add_u32 s19, s17, {c*8192}')
        a(f'buffer_load_dwordx4 v{TMP+2}, s[8:11], s19 offen lds')
    for r in range(16):
        a(f'v_mov_b32 v{CM+r}, 0')
        a(f'v_mov_b32 v{O+r}, 0')
    a(f'''
    v_and_b32 v{TMP}, 31, v0
    v_cmp_eq_u32 vcc, 16, v{TMP}
    v_mov_b32 v{TMP+1}, 0x3f803f80
    v_lshlrev_b32 v{VK}, 5, v{TMP}
    v_cndmask_b32 v{TMP+1}, 0, v{TMP+1}, vcc
    v_lshrrev_b32 v{TMP}, 5, v0
    v_lshl_add_u32 v{VK}, v{TMP}, 4, v{VK}
    v_lshlrev_b32 v{VV}, 8, v{TMP}
    v_and_b32 v{TMP}, 15, v0
    v_lshl_add_u32 v{VV}, v{TMP}, 4, v{VV}
    v_add_u32 v{VV}, 65536, v{VV}
    v_mov_b32 v{VCNT}, {CNT_OFF}
    v_mov_b32 v{VONE}, 1
    s_mov_b32 s20, 0x0000ffff
    s_mov_b32 s21, 0x0000ffff
    s_mov_b32 s22, 0
    ''')
    for r in range(8):
        a(f'v_mov_b32 v{VF0+r}, v{TMP+1}')
    a('s_waitcnt vmcnt(14)')
    a(f'ds_add_u32 v{VCNT}, v{VONE}')
    def poll(off, tag):
        L = a.newlabel('k2_poll' + tag)
        a.label(L)
        a(f'''
        ds_read_b32 v{TMP}, v{VCNT} offset:{off}
        s_waitcnt lgkmcnt(0)
        v_readfirstlane_b32 s23, v{TMP}
        s_cmp_lt_u32 s23, 512
        s_cbranch_scc1 {L}
        ''')
    poll(0, 'a')
    a(f'''
    ds_read_b128 {vr(KF[0],4)}, v{VK}
    ds_read_b128 {vr(KF[1],4)}, v{VK} offset:1024
    s_waitcnt vmcnt(14) lgkmcnt(1)
    v_mfma_f32_32x32x16_bf16 {vr(S[0],16)}, {vr(KF[0],4)}, {vr(QF,4)}, {vr(CM,16)}
    s_nop 15
    s_nop 3
    ''')
    def tile_max(dst, Sb):
        a(f'v_max3_f32 v{dst}, v{Sb}, v{Sb+1}, v{Sb+2}')
        for k in range(3, 15, 2):
            a(f'v_max3_f32 v{dst}, v{dst}, v{Sb+k}, v{Sb+k+1}')
        a(f'v_max_f32 v{dst}, v{dst}, v{Sb+15}')
        a(f'v_mov_b32 v{dst+1}, v{dst}')
        a('s_nop 1')
        a(f'v_permlane32_swap_b32 v{dst}, v{dst+1}')
        a('s_nop 1')
        a(f'v_max_f32 v{dst}, v{dst}, v{dst+1}')
    tile_max(TMP, S[0])
    a(f'v_add_f32 v{TMP}, {BIAS_HEX}, v{TMP}')
    for r in range(16):
        a(f'v_sub_f32 v{S[0]+r}, v{S[0]+r}, v{TMP}')
        a(f'v_sub_f32 v{CM+r}, 0, v{TMP}')
    LOOP = 'k2_loop'
    a.label(LOOP)
    W = [a.newlabel('k2_w') for _ in range(8)]
    DONE = a.newlabel('k2_wd')
    for c in range(7):
        a(f's_cmp_lg_u32 s22, {c}')
        a(f's_cbranch_scc1 {W[c]}')
        a(f's_waitcnt vmcnt({12 - 2*c})')
        a(f'ds_add_u32 v{VCNT}, v{VONE} offset:{4*(c+1)}')
        a(f's_branch {DONE}')
        a.label(W[c])
    a.label(DONE)
    slow = []
    for j in range(8):
        cur, nxt = S[j & 1], S[(j + 1) & 1]
        EXPL = f'k2_exp{j}'
        SLOW = f'k2_slow{j}'
        if j == 5:
            SK = a.newlabel('k2_skpoll')
            a(f's_cmp_ge_u32 s22, 7')
            a(f's_cbranch_scc1 {SK}')
            L = a.newlabel('k2_pollb')
            a.label(L)
            a(f'''
            v_lshl_add_u32 v{TMP}, s22, 2, v{VCNT}
            ds_read_b32 v{TMP}, v{TMP} offset:4
            s_waitcnt lgkmcnt(0)
            v_readfirstlane_b32 s23, v{TMP}
            s_cmp_lt_u32 s23, 512
            s_cbranch_scc1 {L}
            ''')
            a.label(SK)
        a('s_waitcnt lgkmcnt(0)')
        a(f'v_mfma_f32_32x32x16_bf16 {vr(nxt,16)}, {vr(KF[(j+1)&1],4)}, {vr(QF,4)}, {vr(CM,16)}')
        a('s_mov_b64 exec, s[20:21]')
        a(f'ds_read_b128 {vr(VF0,4)}, v{VV} offset:{j*1024}')
        a(f'ds_read_b128 {vr(VF1,4)}, v{VV} offset:{j*1024+512}')
        a('s_mov_b64 exec, -1')
        a(f'ds_read_b128 {vr(KF[j&1],4)}, v{VK} offset:{(j+2)*1024}')
        a.label(EXPL)
        for k in range(4):
            a(f'v_exp_f32 v{T+k}, v{cur+k}')
        for u in range(8):
            a(f'v_cvt_pk_bf16_f32 v{P+u}, v{T+(2*u)%8}, v{T+(2*u+1)%8}')
            if 2*u + 4 < 16:
                a(f'v_exp_f32 v{T+(2*u+4)%8}, v{cur+2*u+4}')
                a(f'v_exp_f32 v{T+(2*u+5)%8}, v{cur+2*u+5}')
        a(f'''
        v_or3_b32 v{TMP}, v{P}, v{P+1}, v{P+2}
        v_or3_b32 v{TMP}, v{TMP}, v{P+3}, v{P+4}
        v_or3_b32 v{TMP}, v{TMP}, v{P+5}, v{P+6}
        v_or_b32 v{TMP}, v{TMP}, v{P+7}
        v_and_b32 v{TMP}, 0x40004000, v{TMP}
        v_cmp_ne_u32 vcc, 0, v{TMP}
        s_waitcnt lgkmcnt(1)
        s_nop 0
        s_cbranch_vccnz {SLOW}
        v_mfma_f32_32x32x16_bf16 {vr(O,16)}, {vr(VF0,4)}, {vr(P,4)}, {vr(O,16)}
        v_mfma_f32_32x32x16_bf16 {vr(O,16)}, {vr(VF1,4)}, {vr(P+4,4)}, {vr(O,16)}
        ''')
        slow.append((SLOW, EXPL, cur, nxt))
    a(f'''
    v_add_u32 v{VK}, 8192, v{VK}
    v_add_u32 v{VV}, 8192, v{VV}
    s_add_u32 s22, s22, 1
    s_cmp_lt_u32 s22, 8
    s_cbranch_scc1 {LOOP}
    ''')
    a('s_nop 15')
    a('s_nop 3')
    a(f'''
    v_mov_b32 v{TMP}, v{O+8}
    v_mov_b32 v{TMP+1}, v{O+8}
    s_nop 1
    v_permlane32_swap_b32 v{TMP}, v{TMP+1}
    s_nop 1
    v_rcp_f32 v{TMP}, v{TMP}
    s_nop 0
    ''')
    for r in range(8):
        a(f'v_mul_f32 v{O+r}, v{O+r}, v{TMP}')
    for u in range(4):
        a(f'v_cvt_pk_bf16_f32 v{P+u}, v{O+2*u}, v{O+2*u+1}')
    a(f'''
    s_lshl_b32 s15, s13, 5
    s_add_u32 s15, s15, {WS_OP}
    buffer_store_dwordx4 {vr(P,4)}, v{TMP+3}, s[8:11], s15 offen
    s_waitcnt vmcnt(0)
    s_endpgm
    ''')
    for SLOW, EXPL, cur, nxt in slow:
        a.label(SLOW)
        tile_max(TMP, cur)
        a(f'''
        v_add_f32 v{TMP}, {BIAS_HEX}, v{TMP}
        v_max_f32 v{TMP}, 0, v{TMP}
        v_sub_f32 v{TMP+1}, 0, v{TMP}
        v_exp_f32 v{TMP+1}, v{TMP+1}
        ''')
        for r in range(16):
            a(f'v_sub_f32 v{cur+r}, v{cur+r}, v{TMP}')
            a(f'v_sub_f32 v{nxt+r}, v{nxt+r}, v{TMP}')
            a(f'v_sub_f32 v{CM+r}, v{CM+r}, v{TMP}')
        for r in range(9):
            a(f'v_mul_f32 v{O+r}, v{O+r}, v{TMP+1}')
        a(f's_branch {EXPL}')

def emit_k2(a, name):
    kernel_head(a, name)
    a(f'''
    s_cmp_ge_u32 s2, 256
    s_cbranch_scc1 k2_end
    s_load_dwordx2 s[4:5], s[0:1], 80
    v_lshrrev_b32 v1, 6, v0
    v_and_b32 v0, 63, v0
    s_and_b32 s13, s2, 7
    s_lshl_b32 s13, s13, 2
    s_bfe_u32 s14, s2, 0x20003
    s_add_u32 s13, s13, s14
    s_lshr_b32 s14, s2, 5
    v_readfirstlane_b32 s12, v1
    s_waitcnt lgkmcnt(0)
    ''')
    build_srd(a, 8, 4, 5, WS_SIZE_SRD)
    a(f'''
    s_cmp_lg_u32 s12, 0
    s_cbranch_scc1 k2_nozero
    v_lshlrev_b32 v1, 2, v0
    v_add_u32 v1, {CNT_OFF}, v1
    v_mov_b32 v2, 0
    ds_write_b32 v1, v2
    s_waitcnt lgkmcnt(0)
    ''')
    a.label('k2_nozero')
    a('s_barrier')
    a('s_cmp_lt_u32 s12, 8')
    a('s_cbranch_scc1 k2_attn')
    if k2moe is not None:
        k2moe.emit_moe(a)
    a.label('k2_end')
    a('s_endpgm')
    a.label('k2_attn')
    emit_attn(a)
```

```python
from common import *

HB = 131072 + 1536
RS2 = 192
RS3 = 576
DEBUG = False
NSL = 43

def emit_moe(a):
    a(f'''
    s_cmp_ge_u32 s2, {NSL}
    s_cbranch_scc1 k2_end
    s_load_dwordx4 s[24:27], s[0:1], 40
    s_load_dwordx2 s[28:29], s[0:1], 56
    s_setprio 2
    ''')
    a('v_lshlrev_b32 v1, 7, v0')
    a(f's_mov_b32 s30, {WS_KEY}')
    for j in range(8):
        a(f'buffer_load_dwordx4 {vr(16+4*j,4)}, v1, s[8:11], s30 offen offset:{16*j}')
    a('s_waitcnt lgkmcnt(0)')
    build_srd(a, 32, 24, 25, 1409024)
    build_srd(a, 36, 26, 27, 1409024)
    build_srd(a, 40, 28, 29, 1409024)
    a(f'''
    v_lshrrev_b32 v1, 2, v0
    s_movk_i32 s30, 2752
    v_mul_lo_u32 v2, v1, s30
    v_and_b32 v3, 3, v0
    v_lshl_add_u32 v2, v3, 4, v2
    s_lshl_b32 s31, s2, 6
    v_add_u32 v2, s31, v2
    v_mul_u32_u24 v4, {RS2}, v1
    v_lshl_add_u32 v4, v3, 4, v4
    v_add_u32 v4, {HB}, v4
    ''')
    STG = 80
    def ldw(q):
        for j in range(4):
            a(f'v_add_u32 v12, {(64*q + 16*j)*2752}, v2')
            a(f'buffer_load_dwordx4 {vr(48+8*j,4)}, v12, s[32:35], 0 offen')
            a(f'buffer_load_dwordx4 {vr(48+8*j+4,4)}, v12, s[36:39], 0 offen')
    def stw(buf):
        for j in range(4):
            a(f'ds_write_b128 v4, {vr(48+8*j,4)} offset:{buf*64*RS2 + 16*j*RS2}')
            a(f'ds_write_b128 v4, {vr(48+8*j+4,4)} offset:{buf*64*RS2 + 16*j*RS2 + 64}')
    ldw(0)
    a('s_waitcnt vmcnt(8)')
    K0 = 16; UT = 112
    for t in range(8):
        if t == 0:
            src = lambda r: f'v{K0+r}'
            a(f'v_max3_u32 v1, v{K0}, v{K0+1}, v{K0+2}')
            for k in range(3, 31, 2):
                a(f'v_max3_u32 v1, v1, v{K0+k}, v{K0+k+1}')
            a(f'v_max_u32 v1, v1, v{K0+31}')
        else:
            for half in range(2):
                for r in range(16):
                    a(f'v_subrev_u32 v{UT+r}, s{47+t}, v{K0+16*half+r}')
                if half == 0:
                    a(f'v_max3_u32 v1, v{UT}, v{UT+1}, v{UT+2}')
                    for k in range(3, 15, 2):
                        a(f'v_max3_u32 v1, v1, v{UT+k}, v{UT+k+1}')
                    a(f'v_max_u32 v1, v1, v{UT+15}')
                else:
                    for k in range(0, 16, 2):
                        a(f'v_max3_u32 v1, v1, v{UT+k}, v{UT+k+1}')
        for ror in (8, 4, 2, 1):
            a('s_nop 1')
            a(f'v_max_u32_dpp v1, v1, v1 row_ror:{ror} row_mask:0xf bank_mask:0xf')
        a('s_nop 1')
        a('v_readlane_b32 s60, v1, 0')
        a('v_readlane_b32 s61, v1, 16')
        a('v_readlane_b32 s62, v1, 32')
        a('v_readlane_b32 s63, v1, 48')
        a('s_max_u32 s60, s60, s61')
        a('s_max_u32 s62, s62, s63')
        a('s_max_u32 s60, s60, s62')
        if t == 0:
            a(f's_mov_b32 s{48+t}, s60')
        else:
            a(f's_add_u32 s{48+t}, s60, s{47+t}')
        a('s_nop 4')
    a('v_mov_b32 v5, 0')
    for t in range(8):
        a(f's_and_b32 s60, s{48+t}, 0xffff')
        a(f's_sub_u32 s60, 2047, s60')
        a(f's_lshl_b32 s61, s60, 10')
        a(f'v_writelane_b32 v5, s61, {t}')
        a(f'v_writelane_b32 v5, s61, {t+32}')
    a(f'''
    v_lshrrev_b32 v6, 5, v0
    v_lshl_add_u32 v5, v6, 4, v5
    ''')
    SKS = a.newlabel('k2_sksel')
    a(f'''
    s_cmp_lg_u32 s2, 0
    s_cbranch_scc1 {SKS}
    v_mov_b32 v7, 0
    ''')
    for t in range(8):
        a(f'v_writelane_b32 v7, s{48+t}, {t}')
    a(f'''
    v_and_b32 v8, 0xffff, v7
    v_sub_u32 v8, 2047, v8
    v_lshrrev_b32 v9, 16, v7
    v_and_b32 v10, 0x8000, v9
    v_cmp_ne_u32 vcc, 0, v10
    v_xor_b32 v10, 0x8000, v9
    v_xor_b32 v11, 0xffff, v9
    s_nop 0
    v_cndmask_b32 v9, v11, v10, vcc
    v_lshlrev_b32 v9, 16, v9
    v_mul_f32 v10, 0xbfb8aa3b, v9
    v_exp_f32 v10, v10
    s_nop 0
    v_add_f32 v10, 1.0, v10
    v_rcp_f32 v10, v10
    s_nop 0
    v_cvt_pk_bf16_f32 v10, 0, v10
    v_lshlrev_b32 v11, 2, v0
    v_cmp_gt_u32 vcc, 8, v0
    s_and_saveexec_b64 s[60:61], vcc
    s_mov_b32 s62, {WS_SEL}
    buffer_store_dword v8, v11, s[8:11], s62 offen
    buffer_store_dword v10, v11, s[8:11], s62 offen offset:32
    s_mov_b64 exec, s[60:61]
    ''')
    a.label(SKS)
    XF = 16; WG = [112, 120]; WU = [116, 124]; DG = 80; DU = 96
    for r in range(16):
        a(f'v_mov_b32 v{XF+r}, 0')
        a(f'v_mov_b32 v{DG+r}, 0')
        a(f'v_mov_b32 v{DU+r}, 0')
    a(f'''
    s_mov_b32 s44, 0x000000ff
    s_mov_b32 s45, 0x000000ff
    v_lshrrev_b32 v6, 5, v0
    v_lshlrev_b32 v6, 3, v6
    v_bfe_u32 v7, v0, 2, 2
    v_add_u32 v6, v6, v7
    v_mul_u32_u24 v6, {RS2}, v6
    v_bfe_u32 v7, v0, 4, 1
    v_lshl_add_u32 v6, v7, 5, v6
    v_and_b32 v7, 3, v0
    v_lshl_add_u32 v6, v7, 3, v6
    v_add_u32 v6, {HB}, v6
    ''')
    for q in range(8):
        buf = q & 1
        a('s_waitcnt vmcnt(0)')
        stw(buf)
        a('s_mov_b64 exec, s[44:45]')
        for s in range(4):
            a(f'buffer_load_dwordx4 {vr(XF+4*s,4)}, v5, s[8:11], 0 offen offset:{q*128 + s*32}')
        a('s_mov_b64 exec, -1')
        if q < 7:
            ldw(q + 1)
        a(f's_waitcnt vmcnt({8 if q < 7 else 0}) lgkmcnt(0)')
        for s in range(4):
            st = s & 1
            for u in range(2):
                a(f'ds_read_b64_tr_b16 {vr(WG[st]+2*u,2)}, v6 offset:{buf*64*RS2 + (16*s+4*u)*RS2}')
                a(f'ds_read_b64_tr_b16 {vr(WU[st]+2*u,2)}, v6 offset:{buf*64*RS2 + (16*s+4*u)*RS2 + 64}')
            a('s_waitcnt lgkmcnt(0)')
            a(f'v_mfma_f32_32x32x16_bf16 {vr(DG,16)}, {vr(WG[st],4)}, {vr(XF+4*s,4)}, {vr(DG,16)}')
            a(f'v_mfma_f32_32x32x16_bf16 {vr(DU,16)}, {vr(WU[st],4)}, {vr(XF+4*s,4)}, {vr(DU,16)}')
    if DEBUG:
        a('s_nop 15')
        a('s_nop 15')
        a('v_lshlrev_b32 v12, 7, v0')
        a('s_lshl_b32 s60, s2, 13')
        a('s_add_u32 s60, s60, %d' % (12*MB))
        for r in range(16):
            a(f'buffer_store_dword v{80+r}, v12, s[8:11], s60 offen offset:{4*r}')
            a(f'buffer_store_dword v{96+r}, v12, s[8:11], s60 offen offset:{64+4*r}')
        a('s_waitcnt vmcnt(0)')
    a(f'''
    v_lshrrev_b32 v1, 5, v0
    s_lshl_b32 s31, s2, 5
    v_add_u32 v1, s31, v1
    v_lshlrev_b32 v1, 10, v1
    v_and_b32 v2, 31, v0
    v_lshl_add_u32 v1, v2, 4, v1
    v_lshrrev_b32 v3, 5, v0
    v_mul_u32_u24 v3, {RS3}, v3
    v_lshl_add_u32 v3, v2, 4, v3
    v_add_u32 v3, {HB}, v3
    ''')
    DS = 16
    def ldd(hc):
        for j in range(16):
            a(f'v_add_u32 v4, {2*j*1024}, v1')
            a(f'buffer_load_dwordx4 {vr(DS+4*j,4)}, v4, s[40:43], 0 offen offset:{hc*512}')
    def std():
        for j in range(16):
            a(f'ds_write_b128 v3, {vr(DS+4*j,4)} offset:{2*j*RS3}')
    ldd(0)
    a('s_nop 7')
    H = 112
    for r in range(16):
        a(f'v_cvt_pk_bf16_f32 v{DG+r}, 0, v{DG+r}')
        a(f'v_cvt_pk_bf16_f32 v{DU+r}, 0, v{DU+r}')
    for half in range(2):
        for r in range(8):
            rr = DG + 8*half + r
            a(f'v_mul_f32 v{120+r}, 0xbfb8aa3b, v{rr}')
        for r in range(8):
            a(f'v_exp_f32 v{120+r}, v{120+r}')
        for r in range(8):
            a(f'v_add_f32 v{120+r}, 1.0, v{120+r}')
        for r in range(8):
            a(f'v_rcp_f32 v{120+r}, v{120+r}')
        for r in range(8):
            rr = DG + 8*half + r
            a(f'v_mul_f32 v{rr}, v{rr}, v{120+r}')
        for r in range(8):
            rr = DG + 8*half + r
            a(f'v_cvt_pk_bf16_f32 v{rr}, 0, v{rr}')
        for r in range(8):
            rr = DG + 8*half + r
            a(f'v_mul_f32 v{rr}, v{rr}, v{DU+8*half+r}')
    for u in range(8):
        a(f'v_cvt_pk_bf16_f32 v{H+u}, v{DG+2*u}, v{DG+2*u+1}')
    a(f'''
    v_lshrrev_b32 v6, 5, v0
    v_lshlrev_b32 v6, 2, v6
    v_bfe_u32 v7, v0, 2, 2
    v_add_u32 v6, v6, v7
    v_mul_u32_u24 v6, {RS3}, v6
    v_bfe_u32 v7, v0, 4, 1
    v_lshl_add_u32 v6, v7, 5, v6
    v_and_b32 v7, 3, v0
    v_lshl_add_u32 v6, v7, 3, v6
    v_add_u32 v6, {HB}, v6
    v_lshrrev_b32 v7, 5, v0
    v_lshlrev_b32 v7, 13, v7
    v_and_b32 v8, 31, v0
    v_lshl_add_u32 v7, v8, 2, v7
    v_add_u32 v8, 4096, v7
    s_mov_b32 s46, {WS_Y}
    ''')
    AC = 96; WD = [80, 88]
    for hc in range(2):
        a('s_waitcnt vmcnt(0)')
        std()
        if hc == 0:
            ldd(1)
        a('s_waitcnt lgkmcnt(0)')
        for cb in range(8):
            st = cb & 1
            for t in range(2):
                for u in range(2):
                    a(f'ds_read_b64_tr_b16 {vr(WD[st]+4*t+2*u,2)}, v6 offset:{(16*t+8*u)*RS3 + cb*64}')
            for r in range(4):
                a(f'v_mov_b32 v{AC+r}, 0')
            for r in range(4, 16):
                if cb == 0 and hc == 0:
                    a(f'v_mov_b32 v{AC+r}, 0')
            a('s_waitcnt lgkmcnt(0)')
            a(f'v_mfma_f32_32x32x16_bf16 {vr(AC,16)}, {vr(H,4)}, {vr(WD[st],4)}, {vr(AC,16)}')
            a(f'v_mfma_f32_32x32x16_bf16 {vr(AC,16)}, {vr(H+4,4)}, {vr(WD[st]+4,4)}, {vr(AC,16)}')
            a('s_nop 15')
            a('s_nop 3')
            for b in range(4):
                a(f'buffer_atomic_add_f32 v{AC+b}, v{7 + b//2}, s[8:11], s46 offen offset:{(b%2)*2048 + (hc*256 + cb*32)*4}')
            a('s_nop 1')
    a('s_waitcnt vmcnt(0)')
```

```python
from common import *

K3_RS = 192
K3_LDS = 512 * K3_RS
K3_VGPR = 256

ST = 16
OF = 80
ACC = 208
WF = [224, 228]
XA = 232
XB = 240
U = 16
TT = 32

def emit_k3(a, name):
    kernel_head(a, name)
    a(f'''
    s_cmp_ge_u32 s2, 256
    s_cbranch_scc1 k3_end
    s_load_dwordx2 s[4:5], s[0:1], 0
    s_load_dwordx2 s[6:7], s[0:1], 16
    s_load_dwordx4 s[28:31], s[0:1], 64
    s_load_dwordx2 s[10:11], s[0:1], 80
    v_lshrrev_b32 v1, 6, v0
    v_and_b32 v0, 63, v0
    s_lshr_b32 s40, s2, 3
    s_and_b32 s41, s2, 7
    v_readfirstlane_b32 s42, v1
    s_waitcnt lgkmcnt(0)
    ''')
    build_srd(a, 12, 4, 5, 2097152)
    build_srd(a, 16, 6, 7, 524288)
    build_srd(a, 20, 28, 29, 2097152)
    build_srd(a, 24, 10, 11, WS_SIZE_SRD)
    a(f'''
    s_add_u32 s44, s10, {WS_SEL}
    s_addc_u32 s45, s11, 0
    s_load_dwordx16 s[64:79], s[44:45], 0
    ''')
    a(f'''
    v_lshrrev_b32 v1, 3, v0
    s_lshl_b32 s46, s42, 7
    v_add_u32 v1, s46, v1
    v_and_b32 v2, 7, v0
    v_lshlrev_b32 v3, 10, v1
    v_lshl_add_u32 v3, v2, 4, v3
    s_lshl_b32 s47, s41, 7
    v_add_u32 v3, s47, v3
    v_mul_u32_u24 v4, {K3_RS}, v1
    v_lshl_add_u32 v4, v2, 4, v4
    ''')
    for j in range(16):
        a(f'v_add_u32 v5, {j*8*1024}, v3')
        a(f'buffer_load_dwordx4 {vr(ST+4*j,4)}, v5, s[16:19], 0 offen')
    a(f'''
    v_and_b32 v5, 31, v0
    s_lshl_b32 s46, s40, 6
    s_and_b32 s47, s42, 1
    s_lshl_b32 s47, s47, 5
    s_add_u32 s46, s46, s47
    v_add_u32 v5, s46, v5
    v_lshlrev_b32 v6, 10, v5
    v_lshrrev_b32 v7, 5, v0
    v_lshl_add_u32 v6, v7, 4, v6
    s_mov_b32 s48, {WS_OP}
    ''')
    for h in range(32):
        a(f'buffer_load_dwordx4 {vr(OF+4*h,4)}, v6, s[24:27], s48 offen offset:{h*32}')
    a(f'''
    v_lshlrev_b32 v8, 10, v5
    v_lshl_add_u32 v8, v7, 3, v8
    s_lshl_b32 s46, s41, 7
    s_lshr_b32 s47, s42, 1
    s_lshl_b32 s47, s47, 6
    s_add_u32 s46, s46, s47
    v_add_u32 v8, s46, v8
    ''')
    for g in range(4):
        a(f'buffer_load_dwordx2 {vr(XA+2*g,2)}, v8, s[12:15], 0 offen offset:{16*g}')
        a(f'buffer_load_dwordx2 {vr(XB+2*g,2)}, v8, s[24:27], 0 offen offset:{16*g}')
    a('s_waitcnt vmcnt(40)')
    for j in range(16):
        a(f'ds_write_b128 v4, {vr(ST+4*j,4)} offset:{j*8*K3_RS}')
    a(f'''
    v_lshrrev_b32 v9, 5, v0
    v_lshlrev_b32 v9, 2, v9
    v_bfe_u32 v10, v0, 2, 2
    v_add_u32 v9, v9, v10
    v_mul_u32_u24 v9, {K3_RS}, v9
    v_bfe_u32 v10, v0, 4, 1
    v_lshl_add_u32 v9, v10, 5, v9
    v_and_b32 v10, 3, v0
    v_lshl_add_u32 v9, v10, 3, v9
    v_add_u32 v9, s47, v9
    v_add_u32 v10, {256*K3_RS}, v9
    ''')
    for r in range(16):
        a(f'v_mov_b32 v{ACC+r}, 0')
    a('s_waitcnt lgkmcnt(0)')
    a('s_barrier')
    def rd(h):
        st = h & 1
        base = 'v9' if h < 16 else 'v10'
        hh_ = h if h < 16 else h - 16
        for u in range(2):
            a(f'ds_read_b64_tr_b16 {vr(WF[st]+2*u,2)}, {base} offset:{(16*hh_ + 8*u)*K3_RS}')
    rd(0)
    for h in range(32):
        if h < 31:
            rd(h + 1)
            a(f's_waitcnt lgkmcnt(2)')
        else:
            a('s_waitcnt lgkmcnt(0)')
        if h == 0:
            a('s_waitcnt vmcnt(8)')
        a(f'v_mfma_f32_32x32x16_bf16 {vr(ACC,16)}, {vr(WF[h&1],4)}, {vr(OF+4*h,4)}, {vr(ACC,16)}')
    a('s_waitcnt vmcnt(0) lgkmcnt(0)')
    for r in range(16):
        a(f'v_mov_b32 v{U+r}, 0')
    for j in range(8):
        SK = a.newlabel('k3_skj')
        a(f'''
        v_cmp_eq_u32 vcc, s{64+j}, v5
        s_cbranch_vccz {SK}
        s_and_saveexec_b64 s[50:51], vcc
        v_lshlrev_b32 v11, 1, v8
        v_and_b32 v11, 0x7ff, v11
        s_mov_b32 s46, {WS_Y + j*2048}
        ''')
        for g in range(4):
            a(f'buffer_load_dwordx4 {vr(TT+4*g,4)}, v11, s[24:27], s46 offen offset:{32*g}')
        a('s_waitcnt vmcnt(0)')
        for r in range(16):
            a(f'v_cvt_pk_bf16_f32 v{TT+r}, 0, v{TT+r}')
        for r in range(16):
            a(f'v_mul_f32 v{TT+r}, s{72+j}, v{TT+r}')
        for r in range(16):
            a(f'v_cvt_pk_bf16_f32 v{U+r}, 0, v{TT+r}')
        a('s_mov_b64 exec, s[50:51]')
        a.label(SK)
    a('s_nop 7')
    for g in range(4):
        for e in range(4):
            r = 4*g + e
            xr = XA + 2*g + e//2
            xb = XB + 2*g + e//2
            a(f'v_cvt_pk_bf16_f32 v{ACC+r}, 0, v{ACC+r}')
            if e % 2 == 0:
                a(f'v_lshlrev_b32 v{TT+r}, 16, v{xr}')
                a(f'v_lshlrev_b32 v{TT+16+r}, 16, v{xb}')
            else:
                a(f'v_and_b32 v{TT+r}, 0xffff0000, v{xr}')
                a(f'v_and_b32 v{TT+16+r}, 0xffff0000, v{xb}')
        for e in range(4):
            r = 4*g + e
            a(f'v_add_f32 v{ACC+r}, v{ACC+r}, v{TT+r}')
            a(f'v_add_f32 v{U+r}, v{U+r}, v{TT+16+r}')
        for e in range(4):
            r = 4*g + e
            a(f'v_cvt_pk_bf16_f32 v{ACC+r}, 0, v{ACC+r}')
            a(f'v_cvt_pk_bf16_f32 v{U+r}, 0, v{U+r}')
        a(f'v_add_f32 v{ACC+4*g}, v{ACC+4*g}, v{U+4*g}')
        a(f'v_add_f32 v{ACC+4*g+1}, v{ACC+4*g+1}, v{U+4*g+1}')
        a(f'v_add_f32 v{ACC+4*g+2}, v{ACC+4*g+2}, v{U+4*g+2}')
        a(f'v_add_f32 v{ACC+4*g+3}, v{ACC+4*g+3}, v{U+4*g+3}')
        a(f'v_cvt_pk_bf16_f32 v{TT+32+2*g}, v{ACC+4*g}, v{ACC+4*g+1}')
        a(f'v_cvt_pk_bf16_f32 v{TT+32+2*g+1}, v{ACC+4*g+2}, v{ACC+4*g+3}')
        a(f'buffer_store_dwordx2 {vr(TT+32+2*g,2)}, v8, s[20:23], 0 offen offset:{16*g}')
    a('s_waitcnt vmcnt(0)')
    a.label('k3_end')
    a('s_endpgm')
```

```python
import sys
from common import *
import k1
try:
    import k2
except ImportError:
    k2 = None
try:
    import k3
except ImportError:
    k3 = None

NAME = 'parallel_sum__softmax_full_mha__moe_arch_mod__prompt'
HEADER = '''; Kernarg layout for this problem (88 bytes, ptrs only, base s[0:1]):
; Three launches: k1 = layernorm + qkv projection + router keys, k2 = attention (+ MoE helper waves),
; k3 = output projection + residuals.
'''

import re
def validate(text):
    for ln in text.split('\n'):
        m = re.search(r'^\s*(buffer_\w+|ds_\w+|global_\w+)\b.*offset:(\d+)', ln)
        if m:
            lim = 4095 if m.group(1).startswith(('buffer', 'global')) else 65535
            assert int(m.group(2)) <= lim, 'offset too large: ' + ln
        m = re.search(r's_waitcnt.*vmcnt\((\d+)\)', ln)
        if m: assert int(m.group(1)) <= 63, ln
        m = re.search(r's_waitcnt.*lgkmcnt\((\d+)\)', ln)
        if m: assert int(m.group(1)) <= 15, ln

def build(which):
    a = Asm()
    launches = []
    descs = []
    if 'k1' in which:
        launches.append(f'; @launch kernel=k1_kernel grid=(256,1,1) block=(256,1,1) lds={k1.K1_LDS}')
    if 'k2' in which:
        launches.append(f'; @launch kernel=k2_kernel grid=(256,1,1) block=(576,1,1) lds={k2.K2_LDS}')
    if 'k3' in which:
        launches.append(f'; @launch kernel=k3_kernel grid=(256,1,1) block=(256,1,1) lds={k3.K3_LDS}')
    out = HEADER + '\n'.join(launches) + '\n'
    out += '.amdgcn_target "amdgcn-amd-amdhsa--gfx950"\n.text\n'
    if 'k1' in which:
        k1.emit_k1(a, 'k1_kernel'); descs.append(kernel_desc('k1_kernel', k1.K1_VGPR))
    if 'k2' in which:
        k2.emit_k2(a, 'k2_kernel'); descs.append(kernel_desc('k2_kernel', k2.K2_VGPR))
    if 'k3' in which:
        k3.emit_k3(a, 'k3_kernel'); descs.append(kernel_desc('k3_kernel', k3.K3_VGPR))
    out += a.text()
    out += '.section .rodata,"a"\n.p2align 6\n' + '.p2align 6\n'.join(descs)
    validate(out)
    return out

if __name__ == '__main__':
    which = sys.argv[1].split(',') if len(sys.argv) > 1 else ['k1', 'k2', 'k3']
    path = sys.argv[2] if len(sys.argv) > 2 else f'cdna_kernels/{NAME}.s'
    open(path, 'w').write(build(which))
    print('wrote', path)
```

```python
from common import *
try:
    import k2moe
except ImportError:
    k2moe = None

K2_LDS = 163840
K2_VGPR = 128
STAMP = False
DIAG = ''
CNT_OFF = 131072
CONST_OFF = CNT_OFF + 256
BIAS_HEX = '0x42c00000'

QF = 4; KF = [8, 12]; T = 32
PB = [24, 112]; VB = [16, 120]
VK = 40; VV = 41; VCNT = 42; VONE = 43; TMP = 44; VOUT = 47; VINC = 3
S = [48, 64]; CM = 80; O = 96

def stamp(a, i):
    if STAMP:
        a(f's_memtime s[{90+2*i}:{91+2*i}]')
        if i == 0:
            a('s_memrealtime s[28:29]')
        if i == 4:
            a('s_memrealtime s[30:31]')

def stamp_flush(a):
    if STAMP:
        a('s_waitcnt lgkmcnt(0)')
        a('s_mul_i32 s24, s2, 9')
        a('s_add_u32 s24, s24, s12')
        a('s_lshl_b32 s24, s24, 6')
        a('s_add_u32 s24, s24, %d' % (12*MB))
        a(f'v_mov_b32 v{TMP}, s28')
        a(f'v_mov_b32 v{TMP+1}, 0')
        a(f'buffer_store_dword v{TMP}, v{TMP+1}, s[8:11], s24 offen offset:44')
        a(f'v_mov_b32 v{TMP}, s30')
        a(f'buffer_store_dword v{TMP}, v{TMP+1}, s[8:11], s24 offen offset:48')
        a(f'v_mov_b32 v{TMP}, s26')
        a(f'v_mov_b32 v{TMP+1}, 0')
        a(f'buffer_store_dword v{TMP}, v{TMP+1}, s[8:11], s24 offen offset:40')
        for i in range(5):
            a(f'v_mov_b32 v{TMP}, s{90+2*i}')
            a(f'v_mov_b32 v{TMP+1}, 0')
            a(f'buffer_store_dword v{TMP}, v{TMP+1}, s[8:11], s24 offen offset:{8*i}')
        a('s_waitcnt vmcnt(0)')

def tile_max(a, dst, Sb):
    a(f'v_max3_f32 v{dst}, v{Sb}, v{Sb+1}, v{Sb+2}')
    for k in range(3, 15, 2):
        a(f'v_max3_f32 v{dst}, v{dst}, v{Sb+k}, v{Sb+k+1}')
    a(f'v_max_f32 v{dst}, v{dst}, v{Sb+15}')
    a(f'v_mov_b32 v{dst+1}, v{dst}')
    a('s_nop 1')
    a(f'v_permlane32_swap_b32 v{dst}, v{dst+1}')
    a('s_nop 1')
    a(f'v_max_f32 v{dst}, v{dst}, v{dst+1}')

def expcvt(a, cur, Pc, Pp, Vp, first, with_pv):
    for k in range(first, 4):
        a(f'v_exp_f32 v{T+k}, v{cur+k}')
    for u in range(8):
        a(f'v_cvt_pk_bf16_f32 v{Pc+u}, v{T+(2*u)%8}, v{T+(2*u+1)%8}')
        if with_pv and u == 1:
            a(f'v_mfma_f32_32x32x16_bf16 {vr(O,16)}, {vr(Vp,4)}, {vr(Pp,4)}, {vr(O,16)}')
        if with_pv and u == 4:
            a(f'v_mfma_f32_32x32x16_bf16 {vr(O,16)}, {vr(Vp+4,4)}, {vr(Pp+4,4)}, {vr(O,16)}')
        if u == 6:
            a(f'v_or3_b32 v{TMP}, v{Pc}, v{Pc+1}, v{Pc+2}')
            a(f'v_or3_b32 v{TMP}, v{TMP}, v{Pc+3}, v{Pc+4}')
        if 2*u + 4 < 16:
            a(f'v_exp_f32 v{T+(2*u+4)%8}, v{cur+2*u+4}')
            a(f'v_exp_f32 v{T+(2*u+5)%8}, v{cur+2*u+5}')
    a(f'''
    v_or3_b32 v{TMP}, v{TMP}, v{Pc+5}, v{Pc+6}
    v_or_b32 v{TMP}, v{TMP}, v{Pc+7}
    v_and_b32 v{TMP}, 0x40004000, v{TMP}
    v_cmp_ne_u32 vcc, 0, v{TMP}
    ''')

def emit_slow(a, label, ret, cur, nxt, Pc, undo_vv):
    a.label(label)
    if STAMP:
        a('s_add_u32 s26, s26, 1')
    a('s_nop 15')
    a('s_nop 15')
    tile_max(a, TMP, cur)
    a(f'''
    v_add_f32 v{TMP}, {BIAS_HEX}, v{TMP}
    v_max_f32 v{TMP}, 0, v{TMP}
    v_sub_f32 v{TMP+1}, 0, v{TMP}
    v_exp_f32 v{TMP+1}, v{TMP+1}
    ''')
    for r in range(16):
        a(f'v_sub_f32 v{cur+r}, v{cur+r}, v{TMP}')
        a(f'v_sub_f32 v{nxt+r}, v{nxt+r}, v{TMP}')
        a(f'v_sub_f32 v{CM+r}, v{CM+r}, v{TMP}')
    for r in range(9):
        a(f'v_mul_f32 v{O+r}, v{O+r}, v{TMP+1}')
    expcvt(a, cur, Pc, 0, 0, 0, False)
    a('s_nop 1')
    a(f's_cbranch_vccnz {label}')
    if undo_vv:
        a(f'v_sub_u32 v{VV}, v{VV}, v{VINC}')
    a(f's_branch {ret}')

def emit_attn(a):
    stamp(a, 0)
    if STAMP:
        a('s_mov_b32 s26, 0')
    a(f'''
    v_and_b32 v{TMP}, 31, v0
    s_lshl_b32 s15, s14, 8
    s_lshl_b32 s18, s12, 5
    s_add_u32 s15, s15, s18
    v_add_u32 v{TMP}, s15, v{TMP}
    v_lshlrev_b32 v{VOUT}, 10, v{TMP}
    v_lshlrev_b32 v{TMP}, 5, v{TMP}
    v_lshrrev_b32 v{TMP+1}, 5, v0
    v_lshl_add_u32 v{TMP}, v{TMP+1}, 4, v{TMP}
    v_lshl_add_u32 v{VOUT}, v{TMP+1}, 4, v{VOUT}
    s_lshl_b32 s15, s13, 16
    s_add_u32 s18, s15, {WS_QP}
    buffer_load_dwordx4 {vr(QF,4)}, v{TMP}, s[8:11], s18 offen
    s_add_u32 s16, s15, {WS_KP}
    s_add_u32 s17, s15, {WS_VP}
    s_lshl_b32 s18, s12, 10
    s_add_u32 s16, s16, s18
    s_add_u32 s17, s17, s18
    v_lshlrev_b32 v{TMP+2}, 4, v0
    ''')
    for c in range(8):
        a(f's_add_u32 s19, s18, {c*8192}')
        a(f's_mov_b32 m0, s19')
        a(f's_add_u32 s19, s16, {c*8192}')
        a(f'buffer_load_dwordx4 v{TMP+2}, s[8:11], s19 offen lds')
        a(f's_add_u32 s19, s18, {65536 + c*8192}')
        a(f's_mov_b32 m0, s19')
        a(f's_add_u32 s19, s17, {c*8192}')
        a(f'buffer_load_dwordx4 v{TMP+2}, s[8:11], s19 offen lds')
    for r in range(16):
        a(f'v_mov_b32 v{CM+r}, 0')
        a(f'v_mov_b32 v{O+r}, 0')
    for r in range(8):
        a(f'v_mov_b32 v{VB[1]+r}, 0')
        a(f'v_mov_b32 v{PB[1]+r}, 0')
    a(f'''
    v_and_b32 v{TMP}, 31, v0
    v_lshlrev_b32 v{VK}, 5, v{TMP}
    v_lshrrev_b32 v{TMP+1}, 5, v0
    v_lshl_add_u32 v{VK}, v{TMP+1}, 4, v{VK}
    v_lshlrev_b32 v{VV}, 8, v{TMP+1}
    v_and_b32 v{TMP+1}, 15, v0
    v_lshl_add_u32 v{VV}, v{TMP+1}, 4, v{VV}
    v_add_u32 v{VV}, 65536, v{VV}
    v_cmp_gt_u32 vcc, 16, v{TMP}
    v_mov_b32 v{VINC}, 0
    v_mov_b32 v{TMP+1}, 1024
    v_cndmask_b32 v{VINC}, v{VINC}, v{TMP+1}, vcc
    v_cmp_eq_u32 s[20:21], 16, v{TMP}
    v_mov_b32 v{TMP+1}, {CONST_OFF + 16}
    v_mov_b32 v{TMP+2}, {CONST_OFF}
    s_nop 0
    v_cndmask_b32 v{TMP+1}, v{TMP+1}, v{TMP+2}, s[20:21]
    v_cndmask_b32 v{VV}, v{TMP+1}, v{VV}, vcc
    v_mov_b32 v{VCNT}, {CNT_OFF}
    v_mov_b32 v{VONE}, 1
    s_mov_b32 s22, 0
    ''')
    a('s_barrier')
    a('s_waitcnt vmcnt(14)')
    a(f'ds_add_u32 v{VCNT}, v{VONE}')
    L = a.newlabel('k2_polla')
    a.label(L)
    a(f'''
    ds_read_b32 v{TMP}, v{VCNT}
    s_waitcnt lgkmcnt(0)
    v_readfirstlane_b32 s23, v{TMP}
    s_cmp_lt_u32 s23, 512
    s_cbranch_scc1 {L}
    ''')
    stamp(a, 1)
    a(f'''
    ds_read_b128 {vr(KF[0],4)}, v{VK}
    ds_read_b128 {vr(KF[1],4)}, v{VK} offset:1024
    s_waitcnt vmcnt(14) lgkmcnt(1)
    v_mfma_f32_32x32x16_bf16 {vr(S[0],16)}, {vr(KF[0],4)}, {vr(QF,4)}, {vr(CM,16)}
    s_nop 15
    s_nop 3
    ''')
    tile_max(a, TMP, S[0])
    a(f'v_add_f32 v{TMP}, {BIAS_HEX}, v{TMP}')
    for r in range(16):
        a(f'v_sub_f32 v{S[0]+r}, v{S[0]+r}, v{TMP}')
        a(f'v_sub_f32 v{CM+r}, 0, v{TMP}')
    a('s_mov_b64 vcc, 0')
    stamp(a, 2)
    LOOP = 'k2_loop'
    a.label(LOOP)
    _i0 = len(a.lines)
    W = [a.newlabel('k2_w') for _ in range(8)]
    DONE = a.newlabel('k2_wd')
    for c in range(7):
        a(f's_cmp_lg_u32 s22, {c}')
        a(f's_cbranch_scc1 {W[c]}')
        a(f's_waitcnt vmcnt({12 - 2*c})')
        a(f'ds_add_u32 v{VCNT}, v{VONE} offset:{4*(c+1)}')
        a(f's_branch {DONE}')
        a.label(W[c])
    a.label(DONE)
    for j in range(8):
        cur, nxt = S[j & 1], S[(j + 1) & 1]
        Pc, Pp = PB[j & 1], PB[(j + 1) & 1]
        Vc, Vp = VB[j & 1], VB[(j + 1) & 1]
        if j == 5:
            SK = a.newlabel('k2_skpoll')
            a(f's_cmp_ge_u32 s22, 7')
            a(f's_cbranch_scc1 {SK}')
            L = a.newlabel('k2_pollb')
            a.label(L)
            a(f'''
            v_lshl_add_u32 v{TMP}, s22, 2, v{VCNT}
            ds_read_b32 v{TMP}, v{TMP} offset:4
            s_waitcnt lgkmcnt(0)
            v_readfirstlane_b32 s23, v{TMP}
            s_cmp_lt_u32 s23, 512
            s_cbranch_scc1 {L}
            ''')
            a.label(SK)
        a.label(f'k2_head{j}')
        a(f'ds_read_b128 {vr(Vc,4)}, v{VV}')
        a(f'ds_read_b128 {vr(Vc+4,4)}, v{VV} offset:512')
        a(f'v_add_u32 v{VV}, v{VV}, v{VINC}')
        a(f'v_exp_f32 v{T}, v{cur}')
        a(f'v_exp_f32 v{T+1}, v{cur+1}')
        a(f's_cbranch_vccnz k2_slow{(j-1)%8}')
        a('s_waitcnt lgkmcnt(2)')
        a(f'v_mfma_f32_32x32x16_bf16 {vr(nxt,16)}, {vr(KF[(j+1)&1],4)}, {vr(QF,4)}, {vr(CM,16)}')
        a(f'ds_read_b128 {vr(KF[j&1],4)}, v{VK} offset:{(j+2)*1024}')
        expcvt(a, cur, Pc, Pp, Vp, 2, True)
    if DIAG:
        keep = []
        for ln in a.lines[_i0:]:
            t = ln.strip()
            if 'nolds' in DIAG and t.startswith('ds_read_b128'): continue
            if 'nomfma' in DIAG and t.startswith('v_mfma'): continue
            if 'nochk' in DIAG and (t.startswith('v_or') or t.startswith('v_and_b32') or t.startswith('v_cmp_ne') or t.startswith('s_cbranch_vccnz')): continue
            keep.append(ln)
        a.lines[_i0:] = keep
    a(f'''
    v_add_u32 v{VK}, 8192, v{VK}
    s_add_u32 s22, s22, 1
    s_cmp_lt_u32 s22, 8
    s_cbranch_scc1 {LOOP}
    ''')
    stamp(a, 3)
    a('s_nop 1')
    a('s_cbranch_vccnz k2_slowlast')
    a.label('k2_fin')
    a('s_waitcnt lgkmcnt(0)')
    a(f'v_mfma_f32_32x32x16_bf16 {vr(O,16)}, {vr(VB[1],4)}, {vr(PB[1],4)}, {vr(O,16)}')
    a(f'v_mfma_f32_32x32x16_bf16 {vr(O,16)}, {vr(VB[1]+4,4)}, {vr(PB[1]+4,4)}, {vr(O,16)}')
    a('s_nop 15')
    a('s_nop 3')
    a(f'''
    v_mov_b32 v{TMP}, v{O+8}
    v_mov_b32 v{TMP+1}, v{O+8}
    s_nop 1
    v_permlane32_swap_b32 v{TMP}, v{TMP+1}
    s_nop 1
    v_rcp_f32 v{TMP}, v{TMP}
    s_nop 0
    ''')
    for r in range(8):
        a(f'v_mul_f32 v{O+r}, v{O+r}, v{TMP}')
    for u in range(4):
        a(f'v_cvt_pk_bf16_f32 v{PB[0]+u}, v{O+2*u}, v{O+2*u+1}')
    a(f'''
    s_lshl_b32 s15, s13, 5
    s_add_u32 s15, s15, {WS_OP}
    buffer_store_dwordx4 {vr(PB[0],4)}, v{VOUT}, s[8:11], s15 offen
    s_waitcnt vmcnt(0)
    ''')
    stamp(a, 4)
    stamp_flush(a)
    a('s_endpgm')
    for j in range(8):
        emit_slow(a, f'k2_slow{j}', f'k2_head{(j+1)%8}', S[j & 1], S[(j+1) & 1], PB[j & 1], True)
    emit_slow(a, 'k2_slowlast', 'k2_fin', S[1], S[0], PB[1], False)

def emit_k2(a, name):
    kernel_head(a, name)
    a(f'''
    s_cmp_ge_u32 s2, 256
    s_cbranch_scc1 k2_end
    s_load_dwordx2 s[4:5], s[0:1], 80
    v_lshrrev_b32 v1, 6, v0
    v_and_b32 v0, 63, v0
    s_and_b32 s13, s2, 7
    s_lshl_b32 s13, s13, 2
    s_bfe_u32 s14, s2, 0x20003
    s_add_u32 s13, s13, s14
    s_lshr_b32 s14, s2, 5
    v_readfirstlane_b32 s12, v1
    s_waitcnt lgkmcnt(0)
    ''')
    build_srd(a, 8, 4, 5, WS_SIZE_SRD)
    a(f'''
    s_cmp_lg_u32 s12, 0
    s_cbranch_scc1 k2_nozero
    v_lshlrev_b32 v1, 2, v0
    v_add_u32 v1, {CNT_OFF}, v1
    v_mov_b32 v2, 0
    ds_write_b32 v1, v2
    v_and_b32 v1, 1, v0
    v_cmp_eq_u32 vcc, 0, v1
    v_mov_b32 v2, 0x3f803f80
    v_lshlrev_b32 v1, 4, v0
    v_cndmask_b32 v4, 0, v2, vcc
    v_add_u32 v1, {CONST_OFF}, v1
    v_mov_b32 v5, v4
    v_mov_b32 v6, v4
    v_mov_b32 v7, v4
    ds_write_b128 v1, v[4:7]
    s_waitcnt lgkmcnt(0)
    ''')
    a.label('k2_nozero')
    a('s_cmp_lt_u32 s12, 8')
    a('s_cbranch_scc1 k2_attn')
    a('s_barrier')
    if k2moe is not None:
        k2moe.emit_moe(a)
    a.label('k2_end')
    a('s_endpgm')
    a.label('k2_attn')
    emit_attn(a)
```

```python
from common import *

K1_XN_RS = 1040
K1_W_RS = 448
K1_WBUF0 = 64 * K1_XN_RS
K1_WBUF_SZ = 64 * K1_W_RS
K1_LDS = K1_WBUF0 + 3 * K1_WBUF_SZ
K1_VGPR = 240
STAMP = False
def stamp(a, i):
    if STAMP:
        a(f's_memtime s[{60+2*i}:{61+2*i}]')
def stamp_flush(a, srd, wave_sgpr, base):
    if STAMP:
        a('s_waitcnt lgkmcnt(0)')
        a(f's_lshl_b32 s58, s2, 2')
        a(f's_add_u32 s58, s58, {wave_sgpr}')
        a('s_lshl_b32 s58, s58, 6')
        a('s_add_u32 s58, s58, %d' % base)
        for i in range(6):
            a(f'v_mov_b32 v1, s{60+2*i}')
            a(f'v_mov_b32 v2, 0')
            a(f'buffer_store_dword v1, v2, {srd}, s58 offen offset:{8*i}')
        a('s_waitcnt vmcnt(0)')

def emit_k1(a, name):
    kernel_head(a, name)
    END = 'k1_end'
    a(f'''
    s_cmp_ge_u32 s2, 256
    s_cbranch_scc1 {END}
    s_memtime s[60:61]
    s_load_dwordx4 s[4:7], s[0:1], 0
    s_load_dwordx2 s[8:9], s[0:1], 32
    s_load_dwordx2 s[10:11], s[0:1], 80
    s_lshr_b32 s28, s2, 3
    s_and_b32 s29, s2, 7
    v_lshrrev_b32 v1, 6, v0
    v_and_b32 v2, 63, v0
    v_lshrrev_b32 v3, 4, v2
    v_and_b32 v4, 15, v2
    v_readfirstlane_b32 s30, v1
    s_mov_b32 s40, 0x3f803f80
    s_mov_b32 s41, 0x00003f80
    s_mov_b32 s42, 0x3f800000
    s_mov_b32 s32, 0
    s_mov_b32 s33, 4096
    s_mov_b32 s34, 8192
    s_mov_b32 s35, 12288
    s_waitcnt lgkmcnt(0)
    ''')
    build_srd(a, 12, 4, 5, 2097152)
    build_srd(a, 16, 6, 7, 1572864)
    build_srd(a, 20, 8, 9, 1024)
    build_srd(a, 24, 10, 11, WS_SIZE_SRD)
    a(f'''
    s_lshl_b32 s31, s28, 6
    s_lshl_b32 s36, s30, 4
    s_add_u32 s31, s31, s36
    v_add_u32 v5, s31, v3
    v_lshlrev_b32 v8, 2, v5
    v_lshlrev_b32 v5, 10, v5
    v_lshl_add_u32 v5, v4, 4, v5
    ''')
    a(f'''
    v_add_u32 v6, s36, v3
    v_mul_u32_u24 v6, {K1_XN_RS}, v6
    v_lshl_add_u32 v6, v4, 4, v6
    ''')
    def ldx(p):
        for c in range(4):
            a(f'buffer_load_dwordx4 {vr(64+16*p+4*c,4)}, v5, s[12:15], s{32+p} offen offset:{c*256}')
    ldx(0)
    a('v_lshlrev_b32 v9, 4, v4')
    for c in range(4):
        a(f'buffer_load_dwordx4 {vr(48+4*c,4)}, v9, s[20:23], 0 offen offset:{c*256}')
    ldx(1); ldx(2); ldx(3)
    a('s_mul_i32 s37, s30, 448')
    a('s_lshl_b32 s38, s29, 7')
    for i in range(7):
        a(f'''
        v_add_u32 v9, s37, v2
        v_add_u32 v9, {64*i}, v9
        v_mul_u32_u24 v10, 2341, v9
        v_lshrrev_b32 v10, 16, v10
        v_mul_u32_u24 v11, 28, v10
        v_sub_u32 v11, v9, v11
        v_subrev_u32 v12, 4, v11
        v_cmp_gt_u32 vcc, 24, v11
        s_nop 1
        v_cndmask_b32 v11, v12, v11, vcc
        v_mul_u32_u24 v10, 3072, v10
        v_lshrrev_b32 v12, 3, v11
        v_lshl_add_u32 v10, v12, 10, v10
        v_and_b32 v11, 7, v11
        v_lshl_add_u32 v10, v11, 4, v10
        v_add_u32 v{128+i}, s38, v10
        ''')
    a('s_mul_i32 s37, s30, 7168')
    def ldw(c):
        a(f's_mov_b32 s39, {c*64*3072}')
        for i in range(7):
            a(f's_add_u32 s38, s37, {K1_WBUF0 + (c%3)*K1_WBUF_SZ + i*1024}')
            a('s_mov_b32 m0, s38')
            a('s_nop 0')
            a(f'buffer_load_dwordx4 v{128+i}, s[16:19], s39 offen lds')
    ldw(0); ldw(1); ldw(2)
    a(f'''
    v_and_b32 v13, 31, v2
    s_and_b32 s36, s30, 1
    s_lshl_b32 s36, s36, 5
    v_add_u32 v13, s36, v13
    v_mul_u32_u24 v13, {K1_XN_RS}, v13
    v_lshrrev_b32 v14, 5, v2
    v_lshl_add_u32 v13, v14, 4, v13
    ''')
    a(f'''
    v_lshrrev_b32 v14, 5, v2
    v_lshlrev_b32 v14, 3, v14
    v_bfe_u32 v15, v2, 2, 2
    v_add_u32 v14, v14, v15
    v_mul_u32_u24 v14, {K1_W_RS}, v14
    v_bfe_u32 v15, v2, 4, 1
    v_lshlrev_b32 v15, 5, v15
    v_add_u32 v14, v14, v15
    v_and_b32 v15, 3, v2
    v_lshl_add_u32 v14, v15, 3, v14
    s_lshr_b32 s36, s30, 1
    s_lshl_b32 s36, s36, 6
    v_add_u32 v14, s36, v14
    v_add_u32 v15, {K1_WBUF0 + K1_WBUF_SZ}, v14
    v_add_u32 v135, {K1_WBUF0 + 2*K1_WBUF_SZ}, v14
    v_add_u32 v14, {K1_WBUF0}, v14
    ''')
    stamp(a, 1)
    A1a, A1b, A2a, A2b, MEAN, VAR, RINV, NEGM = 152, 153, 154, 155, 156, 157, 158, 159
    def ln_pass(p):
        X = 64 + 16 * p
        a(f's_waitcnt vmcnt({(3-p)*4 + 21})')
        for j in range(16):
            acc1 = A1a if j % 2 == 0 else A1b
            acc2 = A2a if j % 2 == 0 else A2b
            c1 = '0' if j < 2 else f'v{acc1}'
            c2 = '0' if j < 2 else f'v{acc2}'
            a(f'v_dot2_f32_bf16 v{acc1}, v{X+j}, s40, {c1}')
            a(f'v_dot2_f32_bf16 v{acc2}, v{X+j}, v{X+j}, {c2}')
        a('s_nop 2')
        a(f'v_add_f32 v{A1a}, v{A1a}, v{A1b}')
        a(f'v_add_f32 v{A2a}, v{A2a}, v{A2b}')
        for ror in (8, 4, 2, 1):
            a('s_nop 0')
            a(f'v_add_f32_dpp v{A1a}, v{A1a}, v{A1a} row_ror:{ror} row_mask:0xf bank_mask:0xf')
            a(f'v_add_f32_dpp v{A2a}, v{A2a}, v{A2a} row_ror:{ror} row_mask:0xf bank_mask:0xf')
        a(f'''
        v_mul_f32 v{MEAN}, 0x3b000000, v{A1a}
        v_mul_f32 v{VAR}, 0x3b000000, v{A2a}
        v_fma_f32 v{VAR}, -v{MEAN}, v{MEAN}, v{VAR}
        v_max_f32 v{VAR}, 0, v{VAR}
        v_cvt_pk_bf16_f32 v{MEAN}, 0, v{MEAN}
        v_cvt_pk_bf16_f32 v{VAR}, 0, v{VAR}
        v_add_f32 v{VAR}, 0x3727c5ac, v{VAR}
        v_cvt_pk_bf16_f32 v{VAR}, 0, v{VAR}
        v_sqrt_f32 v{VAR}, v{VAR}
        v_sub_f32 v{NEGM}, 0, v{MEAN}
        v_cvt_pk_bf16_f32 v{VAR}, 0, v{VAR}
        v_rcp_f32 v{RINV}, v{VAR}
        ''')
        D = 16
        for j in range(16):
            a(f'v_dot2_f32_bf16 v{D+2*j}, v{X+j}, s41, v{NEGM}')
            a(f'v_dot2_f32_bf16 v{D+2*j+1}, v{X+j}, s42, v{NEGM}')
        for k in range(32):
            a(f'v_cvt_pk_bf16_f32 v{D+k}, 0, v{D+k}')
        for k in range(32):
            a(f'v_mul_f32 v{D+k}, v{D+k}, v{RINV}')
        for j in range(16):
            a(f'v_cvt_pk_bf16_f32 v{X+j}, v{D+2*j}, v{D+2*j+1}')
        for c in range(4):
            a(f'ds_write_b128 v6, {vr(X+4*c,4)} offset:{p*4*K1_XN_RS + c*256}')
        for j in range(16):
            acc = A1a if j % 2 == 0 else A1b
            c1 = '0' if j < 2 else f'v{acc}'
            a(f'v_dot2_f32_bf16 v{acc}, v{X+j}, v{48+j}, {c1}')
        a('s_nop 2')
        a(f'v_add_f32 v{A1a}, v{A1a}, v{A1b}')
        for ror in (8, 4, 2, 1):
            a('s_nop 1')
            a(f'v_add_f32_dpp v{A1a}, v{A1a}, v{A1a} row_ror:{ror} row_mask:0xf bank_mask:0xf')
        a(f'''
        v_cvt_pk_bf16_f32 v{A1a}, 0, v{A1a}
        v_ashrrev_i32 v{A1b}, 31, v{A1a}
        v_or_b32 v{A1b}, 0x80000000, v{A1b}
        v_xor_b32 v{A1a}, v{A1a}, v{A1b}
        v_and_b32 v{A1a}, 0xffff0000, v{A1a}
        v_lshrrev_b32 v{A1b}, 2, v8
        v_sub_u32 v{A1b}, {2047 - 4*p}, v{A1b}
        v_or_b32 v{A1a}, v{A1a}, v{A1b}
        ''')
        SKK = a.newlabel('k1_skipkey')
        a(f'''
        s_cmp_lg_u32 s29, 0
        s_cbranch_scc1 {SKK}
        v_cmp_eq_u32 vcc, 0, v4
        s_and_saveexec_b64 s[44:45], vcc
        s_mov_b32 s36, {WS_KEY + p*16}
        buffer_store_dword v{A1a}, v8, s[24:27], s36 offen
        s_mov_b64 exec, s[44:45]
        ''')
        a.label(SKK)
        SKX = a.newlabel('k1_skipxn')
        a(f'''
        s_lshl_b32 s36, s30, 1
        s_add_u32 s36, s36, {p//2}
        s_cmp_lg_u32 s29, s36
        s_cbranch_scc1 {SKX}
        ''')
        for c in range(4):
            a(f'buffer_store_dwordx4 {vr(X+4*c,4)}, v5, s[24:27], s{32+p} offen offset:{c*256}')
        a.label(SKX)
    for p in range(4):
        ln_pass(p)
    SKY = 'k1_skipy'
    a(f'''
    s_cmp_lg_u32 s2, 0
    s_cbranch_scc1 {SKY}
    v_mov_b32 v16, 0
    v_mov_b32 v17, 0
    v_mov_b32 v18, 0
    v_mov_b32 v19, 0
    v_lshlrev_b32 v20, 6, v0
    s_mov_b32 s36, {WS_Y}
    buffer_store_dwordx4 v[16:19], v20, s[24:27], s36 offen
    buffer_store_dwordx4 v[16:19], v20, s[24:27], s36 offen offset:16
    buffer_store_dwordx4 v[16:19], v20, s[24:27], s36 offen offset:32
    buffer_store_dwordx4 v[16:19], v20, s[24:27], s36 offen offset:48
    ''')
    a.label(SKY)
    stamp(a, 2)
    AQ, AK, AV = 160, 176, 192
    for r in range(48):
        a(f'v_mov_b32 v{160+r}, 0')
    a('s_waitcnt lgkmcnt(0)')
    XF = [208, 212]; WF = [[216, 220, 224], [228, 232, 236]]
    WB = ['v14', 'v15', 'v135']
    def rd(c, s):
        st = s & 1
        a(f'ds_read_b128 {vr(XF[st],4)}, v13 offset:{128*c + 32*s}')
        for P in range(3):
            for u in range(2):
                a(f'ds_read_b64_tr_b16 {vr(WF[st][P]+2*u,2)}, {WB[c%3]} offset:{(16*s+4*u)*K1_W_RS + P*128}')
    for c in range(8):
        a(f's_waitcnt vmcnt({14 if c == 0 else (7 if c < 7 else 0)})')
        a('s_barrier')
        if 1 <= c <= 5:
            ldw(c + 2)
        rd(c, 0)
        for s in range(4):
            if s < 3:
                rd(c, s+1)
                a('s_waitcnt lgkmcnt(7)')
            else:
                a('s_waitcnt lgkmcnt(0)')
            st = s & 1
            a(f'v_mfma_f32_32x32x16_bf16 {vr(AQ,16)}, {vr(WF[st][0],4)}, {vr(XF[st],4)}, {vr(AQ,16)}')
            a(f'v_mfma_f32_32x32x16_bf16 {vr(AK,16)}, {vr(WF[st][1],4)}, {vr(XF[st],4)}, {vr(AK,16)}')
            a(f'v_mfma_f32_32x32x16_bf16 {vr(AV,16)}, {vr(XF[st],4)}, {vr(WF[st][2],4)}, {vr(AV,16)}')
    stamp(a, 3)
    a('s_nop 15')
    a('s_nop 3')
    a(f'''
    v_and_b32 v16, 31, v2
    s_lshl_b32 s36, s28, 6
    s_and_b32 s37, s30, 1
    s_lshl_b32 s37, s37, 5
    s_add_u32 s36, s36, s37
    v_add_u32 v16, s36, v16
    v_lshlrev_b32 v16, 5, v16
    v_lshrrev_b32 v17, 5, v2
    v_lshl_add_u32 v16, v17, 4, v16
    s_lshl_b32 s36, s29, 2
    s_lshr_b32 s37, s30, 1
    s_lshl_b32 s37, s37, 1
    s_add_u32 s36, s36, s37
    s_lshl_b32 s36, s36, 16
    s_mov_b32 s38, 0x3eb8aa3b
    ''')
    for r in range(16):
        a(f'v_mul_f32 v{AQ+r}, s38, v{AQ+r}')
    for e in range(2):
        for u in range(4):
            a(f'v_cvt_pk_bf16_f32 v{20+4*e+u}, v{AQ+8*e+2*u}, v{AQ+8*e+2*u+1}')
            a(f'v_cvt_pk_bf16_f32 v{28+4*e+u}, v{AK+8*e+2*u}, v{AK+8*e+2*u+1}')
    a(f's_add_u32 s37, s36, {WS_QP}')
    a('buffer_store_dwordx4 v[20:23], v16, s[24:27], s37 offen')
    a(f's_add_u32 s37, s36, {WS_QP + 65536}')
    a('buffer_store_dwordx4 v[24:27], v16, s[24:27], s37 offen')
    a(f's_add_u32 s37, s36, {WS_KP}')
    a('buffer_store_dwordx4 v[28:31], v16, s[24:27], s37 offen')
    a(f's_add_u32 s37, s36, {WS_KP + 65536}')
    a('buffer_store_dwordx4 v[32:35], v16, s[24:27], s37 offen')
    a(f'''
    v_bfe_u32 v16, v2, 4, 1
    v_lshlrev_b32 v16, 16, v16
    v_lshrrev_b32 v17, 5, v2
    v_lshl_add_u32 v16, v17, 8, v16
    v_and_b32 v17, 15, v2
    v_lshl_add_u32 v16, v17, 4, v16
    s_lshl_b32 s37, s28, 1
    s_and_b32 s38, s30, 1
    s_add_u32 s37, s37, s38
    s_lshl_b32 s37, s37, 10
    s_add_u32 s37, s37, s36
    s_add_u32 s37, s37, {WS_VP}
    ''')
    for t in range(2):
        for u in range(4):
            a(f'v_cvt_pk_bf16_f32 v{36+4*t+u}, v{AV+8*t+2*u}, v{AV+8*t+2*u+1}')
    a('buffer_store_dwordx4 v[36:39], v16, s[24:27], s37 offen')
    a('buffer_store_dwordx4 v[40:43], v16, s[24:27], s37 offen offset:512')
    a('s_waitcnt vmcnt(0)')
    stamp(a, 4)
    stamp_flush(a, 's[24:27]', 's30', 13*MB)
    a.label(END)
    a('s_endpgm')
```

```python
from common import *

K3_RS = 192
K3_LDS = 512 * K3_RS
K3_VGPR = 256

ST = 16
OF = 80
ACC = 208
WF = [224, 228]
XA = 232
XB = 240
U = 16
TT = 32

STAMP = False
import k1 as _k1
def stamp(a, i):
    if STAMP:
        a(f's_memtime s[{80+2*i}:{81+2*i}]')
def emit_k3(a, name):
    kernel_head(a, name)
    a(f'''
    s_cmp_ge_u32 s2, 256
    s_cbranch_scc1 k3_end
    s_memtime s[80:81]
    s_load_dwordx2 s[4:5], s[0:1], 0
    s_load_dwordx2 s[6:7], s[0:1], 16
    s_load_dwordx4 s[28:31], s[0:1], 64
    s_load_dwordx2 s[10:11], s[0:1], 80
    v_lshrrev_b32 v1, 6, v0
    v_and_b32 v0, 63, v0
    s_and_b32 s40, s2, 7
    s_lshl_b32 s40, s40, 2
    s_bfe_u32 s41, s2, 0x20003
    s_add_u32 s40, s40, s41
    s_lshr_b32 s41, s2, 5
    v_readfirstlane_b32 s42, v1
    s_waitcnt lgkmcnt(0)
    ''')
    build_srd(a, 12, 4, 5, 2097152)
    build_srd(a, 16, 6, 7, 524288)
    build_srd(a, 20, 28, 29, 2097152)
    build_srd(a, 24, 10, 11, WS_SIZE_SRD)
    a(f'''
    s_add_u32 s44, s10, {WS_SEL}
    s_addc_u32 s45, s11, 0
    s_load_dwordx16 s[64:79], s[44:45], 0
    ''')
    a(f'''
    v_lshrrev_b32 v1, 3, v0
    s_lshl_b32 s46, s42, 7
    v_add_u32 v1, s46, v1
    v_and_b32 v2, 7, v0
    v_lshlrev_b32 v3, 10, v1
    v_lshl_add_u32 v3, v2, 4, v3
    s_lshl_b32 s47, s41, 7
    v_add_u32 v3, s47, v3
    v_mul_u32_u24 v4, {K3_RS}, v1
    v_lshl_add_u32 v4, v2, 4, v4
    ''')
    for j in range(16):
        a(f'v_add_u32 v5, {j*8*1024}, v3')
        a(f'buffer_load_dwordx4 {vr(ST+4*j,4)}, v5, s[16:19], 0 offen')
    a(f'''
    v_and_b32 v5, 31, v0
    s_lshl_b32 s46, s40, 6
    s_and_b32 s47, s42, 1
    s_lshl_b32 s47, s47, 5
    s_add_u32 s46, s46, s47
    v_add_u32 v5, s46, v5
    v_lshlrev_b32 v6, 10, v5
    v_lshrrev_b32 v7, 5, v0
    v_lshl_add_u32 v6, v7, 4, v6
    s_mov_b32 s48, {WS_OP}
    ''')
    for h in range(32):
        a(f'buffer_load_dwordx4 {vr(OF+4*h,4)}, v6, s[24:27], s48 offen offset:{h*32}')
    a(f'''
    v_lshlrev_b32 v8, 10, v5
    v_lshl_add_u32 v8, v7, 3, v8
    s_lshl_b32 s46, s41, 7
    s_lshr_b32 s47, s42, 1
    s_lshl_b32 s47, s47, 6
    s_add_u32 s46, s46, s47
    v_add_u32 v8, s46, v8
    ''')
    for g in range(4):
        a(f'buffer_load_dwordx2 {vr(XA+2*g,2)}, v8, s[12:15], 0 offen offset:{16*g}')
        a(f'buffer_load_dwordx2 {vr(XB+2*g,2)}, v8, s[24:27], 0 offen offset:{16*g}')
    stamp(a, 1)
    a('s_waitcnt vmcnt(40)')
    for j in range(16):
        a(f'ds_write_b128 v4, {vr(ST+4*j,4)} offset:{j*8*K3_RS}')
    a(f'''
    v_lshrrev_b32 v9, 5, v0
    v_lshlrev_b32 v9, 2, v9
    v_bfe_u32 v10, v0, 2, 2
    v_add_u32 v9, v9, v10
    v_mul_u32_u24 v9, {K3_RS}, v9
    v_bfe_u32 v10, v0, 4, 1
    v_lshl_add_u32 v9, v10, 5, v9
    v_and_b32 v10, 3, v0
    v_lshl_add_u32 v9, v10, 3, v9
    v_add_u32 v9, s47, v9
    v_add_u32 v10, {256*K3_RS}, v9
    ''')
    for r in range(16):
        a(f'v_mov_b32 v{ACC+r}, 0')
    a('s_waitcnt lgkmcnt(0)')
    a('s_barrier')
    stamp(a, 2)
    def rd(h):
        st = h & 1
        base = 'v9' if h < 16 else 'v10'
        hh_ = h if h < 16 else h - 16
        for u in range(2):
            a(f'ds_read_b64_tr_b16 {vr(WF[st]+2*u,2)}, {base} offset:{(16*hh_ + 8*u)*K3_RS}')
    rd(0)
    for h in range(32):
        if h < 31:
            rd(h + 1)
            a(f's_waitcnt lgkmcnt(2)')
        else:
            a('s_waitcnt lgkmcnt(0)')
        if h == 0:
            a('s_waitcnt vmcnt(8)')
        a(f'v_mfma_f32_32x32x16_bf16 {vr(ACC,16)}, {vr(WF[h&1],4)}, {vr(OF+4*h,4)}, {vr(ACC,16)}')
    stamp(a, 3)
    a('s_waitcnt vmcnt(0) lgkmcnt(0)')
    for r in range(16):
        a(f'v_mov_b32 v{U+r}, 0')
    for j in range(8):
        SK = a.newlabel('k3_skj')
        a(f'''
        v_cmp_eq_u32 vcc, s{64+j}, v5
        s_cbranch_vccz {SK}
        s_and_saveexec_b64 s[50:51], vcc
        v_lshlrev_b32 v11, 1, v8
        v_and_b32 v11, 0x7ff, v11
        s_mov_b32 s46, {WS_Y + j*2048}
        ''')
        for g in range(4):
            a(f'buffer_load_dwordx4 {vr(TT+4*g,4)}, v11, s[24:27], s46 offen offset:{32*g}')
        a('s_waitcnt vmcnt(0)')
        for r in range(16):
            a(f'v_cvt_pk_bf16_f32 v{TT+r}, 0, v{TT+r}')
        for r in range(16):
            a(f'v_mul_f32 v{TT+r}, s{72+j}, v{TT+r}')
        for r in range(16):
            a(f'v_cvt_pk_bf16_f32 v{U+r}, 0, v{TT+r}')
        a('s_mov_b64 exec, s[50:51]')
        a.label(SK)
    a('s_nop 7')
    for g in range(4):
        for e in range(4):
            r = 4*g + e
            xr = XA + 2*g + e//2
            xb = XB + 2*g + e//2
            a(f'v_cvt_pk_bf16_f32 v{ACC+r}, 0, v{ACC+r}')
            if e % 2 == 0:
                a(f'v_lshlrev_b32 v{TT+r}, 16, v{xr}')
                a(f'v_lshlrev_b32 v{TT+16+r}, 16, v{xb}')
            else:
                a(f'v_and_b32 v{TT+r}, 0xffff0000, v{xr}')
                a(f'v_and_b32 v{TT+16+r}, 0xffff0000, v{xb}')
        for e in range(4):
            r = 4*g + e
            a(f'v_add_f32 v{ACC+r}, v{ACC+r}, v{TT+r}')
            a(f'v_add_f32 v{U+r}, v{U+r}, v{TT+16+r}')
        for e in range(4):
            r = 4*g + e
            a(f'v_cvt_pk_bf16_f32 v{ACC+r}, 0, v{ACC+r}')
            a(f'v_cvt_pk_bf16_f32 v{U+r}, 0, v{U+r}')
        a(f'v_add_f32 v{ACC+4*g}, v{ACC+4*g}, v{U+4*g}')
        a(f'v_add_f32 v{ACC+4*g+1}, v{ACC+4*g+1}, v{U+4*g+1}')
        a(f'v_add_f32 v{ACC+4*g+2}, v{ACC+4*g+2}, v{U+4*g+2}')
        a(f'v_add_f32 v{ACC+4*g+3}, v{ACC+4*g+3}, v{U+4*g+3}')
        a(f'v_cvt_pk_bf16_f32 v{TT+32+2*g}, v{ACC+4*g}, v{ACC+4*g+1}')
        a(f'v_cvt_pk_bf16_f32 v{TT+32+2*g+1}, v{ACC+4*g+2}, v{ACC+4*g+3}')
        a(f'buffer_store_dwordx2 {vr(TT+32+2*g,2)}, v8, s[20:23], 0 offen offset:{16*g}')
    a('s_waitcnt vmcnt(0)')
    stamp(a, 4)
    if STAMP:
        a('s_waitcnt lgkmcnt(0)')
        a('s_lshl_b32 s58, s2, 2')
        a('s_add_u32 s58, s58, s42')
        a('s_lshl_b32 s58, s58, 6')
        a('s_add_u32 s58, s58, %d' % (14*MB))
        for i in range(5):
            a(f'v_mov_b32 v1, s{80+2*i}')
            a(f'v_mov_b32 v2, 0')
            a(f'buffer_store_dword v1, v2, s[24:27], s58 offen offset:{8*i}')
        a('s_waitcnt vmcnt(0)')
    a.label('k3_end')
    a('s_endpgm')
```
